```python
import torch

def _softmax(x, axis=-1):
    return torch.softmax(x, dim=axis)
def _gelu(x):
    return torch.nn.functional.gelu(x, approximate="tanh")
def _silu(x):
    return torch.nn.functional.silu(x)
def _sigmoid(x):
    return torch.sigmoid(x)
def _layernorm(x, axis=-1, eps=1e-5):
    m = x.mean(dim=axis, keepdim=True)
    v = x.var(dim=axis, keepdim=True, unbiased=False)
    return (x - m) / torch.sqrt(v + eps)
def _scatter_add(tgt, idx, src, axis=0):
    return tgt.clone().index_add_(axis, idx, src)
def _segment_sum(src, seg, n):
    out = torch.zeros((n,) + src.shape[1:], dtype=src.dtype)
    return out.index_add_(0, seg, src)
def _pad(x, pw):
    flat = tuple(v for pair in reversed(pw) for v in pair)
    return torch.nn.functional.pad(x, flat)

kernel_name = 'recurrent_scan__ssm_conv_s5__mixer_channel_mlp__prompt'

def setup_inputs():

    _w = (lambda a: (lambda t: t.to(torch.bfloat16) if t.is_floating_point() else t)(torch.as_tensor(a)))
    def _A_setup():
        B, S, D = 1, 2048, 448
        P = D
        Lambda_re = -0.5 * (lambda _x: torch.exp(torch.as_tensor(_x)))((lambda *s: torch.randn(*s, dtype=torch.bfloat16) * 0.4)(P))
        Lambda_im = (lambda *s: torch.randn(*s, dtype=torch.bfloat16) * 0.4)(P) * 1.0
        B_re = (lambda *s: torch.randn(*s, dtype=torch.bfloat16) * 0.4)(P, D) * (D ** -0.5)
        B_im = (lambda *s: torch.randn(*s, dtype=torch.bfloat16) * 0.4)(P, D) * (D ** -0.5)
        C_re = (lambda *s: torch.randn(*s, dtype=torch.bfloat16) * 0.4)(D, P) * (P ** -0.5)
        C_im = (lambda *s: torch.randn(*s, dtype=torch.bfloat16) * 0.4)(D, P) * (P ** -0.5)
        log_dt = (lambda *s: torch.randn(*s, dtype=torch.bfloat16) * 0.4)(P) * 0.3 - 2.0
        Dskip = (lambda *s: torch.randn(*s, dtype=torch.bfloat16) * 0.2)(D)
        return {
            "x": _w((lambda *s: torch.randn(*s, dtype=torch.bfloat16) * 0.05)(B, S, D)),
            "Lambda_re": _w(Lambda_re),
            "Lambda_im": _w(Lambda_im),
            "B_re": _w(B_re),
            "B_im": _w(B_im),
            "C_re": _w(C_re),
            "C_im": _w(C_im),
            "log_dt": _w(log_dt),
            "Dskip": _w(Dskip),
        }
    _A_in = _A_setup()

    def _B_setup():
        B, S, D, F = 1, 2048, 448, 1792
        return {
            "x": _w((lambda *s: torch.randn(*s, dtype=torch.bfloat16) * 0.05)(B, S, D)),
            "w1": _w((lambda *s: torch.randn(*s, dtype=torch.bfloat16) * 0.8)(D, F) * (D ** -0.5)),
            "b1": _w((lambda *s: torch.randn(*s, dtype=torch.bfloat16) * 0.4)(F)),
            "w2": _w((lambda *s: torch.randn(*s, dtype=torch.bfloat16) * 0.1)(F, D) * (F ** -0.5)),
            "b2": _w((lambda *s: torch.randn(*s, dtype=torch.bfloat16) * 0.1)(D)),
        }
    _B_in = _B_setup()

    return {
        "A_x": _A_in["x"],
        "A_Lambda_re": _A_in["Lambda_re"],
        "A_Lambda_im": _A_in["Lambda_im"],
        "A_B_re": _A_in["B_re"],
        "A_B_im": _A_in["B_im"],
        "A_C_re": _A_in["C_re"],
        "A_C_im": _A_in["C_im"],
        "A_log_dt": _A_in["log_dt"],
        "A_Dskip": _A_in["Dskip"],
        "B_x": _B_in["x"],
        "B_w1": _B_in["w1"],
        "B_b1": _B_in["b1"],
        "B_w2": _B_in["w2"],
        "B_b2": _B_in["b2"],
    }

def reference(A_x, A_Lambda_re, A_Lambda_im, A_B_re, A_B_im, A_C_re, A_C_im, A_log_dt, A_Dskip, B_x, B_w1, B_b1, B_w2, B_b2):
    def _A_ref(x, Lambda_re, Lambda_im, B_re, B_im, C_re, C_im, log_dt, Dskip):
        Bsz, L, H = x.shape
        Lam = Lambda_re + 1j * Lambda_im
        Bmat = B_re + 1j * B_im
        Cmat = C_re + 1j * C_im
        dt = torch.exp(log_dt)
        Lam_bar = torch.exp(dt * Lam)
        B_bar = ((Lam_bar - 1.0) / Lam)[:, None] * Bmat
        Bu = torch.einsum("bld,pd->blp", x + 0j, B_bar)
        h = torch.zeros_like(Bu[:, 0, :])
        hs = []
        for t in range(L):
            h = Lam_bar[None, :] * h + Bu[:, t, :]
            hs.append(h)
        hseq = torch.stack(hs, 1)
        y = 2.0 * torch.einsum("blp,dp->bld", hseq, Cmat).real + x * Dskip[None, None, :]
        return y

    def _B_ref(x, w1, b1, w2, b2):
        y = _layernorm(x, axis=-1)
        h = _gelu(torch.einsum("bsd,df->bsf", y, w1) + b1)
        return torch.einsum("bsf,fd->bsd", h, w2) + b2

    x = A_x
    xn = _layernorm(x, axis=-1)
    s = _A_ref(xn, A_Lambda_re, A_Lambda_im, A_B_re, A_B_im, A_C_re, A_C_im, A_log_dt, A_Dskip)
    g = _silu(_B_ref(xn, B_w1, B_b1, B_w2, B_b2))
    return x + s * g
```

```python
import re

TRANS = ("v_exp_f32", "v_log_f32", "v_rcp_f32", "v_rsq_f32", "v_sqrt_f32", "v_sin_f32", "v_cos_f32")


def v(n, cnt=1):
    return f"v{n}" if cnt == 1 else f"v[{n}:{n + cnt - 1}]"


def a(n, cnt=1):
    return f"a{n}" if cnt == 1 else f"a[{n}:{n + cnt - 1}]"


def s(n, cnt=1):
    return f"s{n}" if cnt == 1 else f"s[{n}:{n + cnt - 1}]"


_REG = re.compile(r"^(-?)(?:abs\()?([vas])(?:(\d+)|\[(\d+):(\d+)\])\)?$")


def regs_of(tok):
    tok = tok.strip()
    if tok == "vcc":
        return {("s", "vcc")}
    if tok == "exec":
        return {("s", "exec")}
    if tok == "m0":
        return {("s", "m0")}
    m = _REG.match(tok)
    if not m:
        return set()
    c = m.group(2)
    if m.group(3) is not None:
        return {(c, int(m.group(3)))}
    return {(c, i) for i in range(int(m.group(4)), int(m.group(5)) + 1)}


class Ins:
    __slots__ = ("text", "mn", "ops", "mods", "w", "r", "cls", "states", "tag", "cond")

    def __init__(self, text):
        self.text = text
        self.tag = None
        self.cond = False
        t = text.split(";")[0].strip()
        self.states = 1
        if t.endswith(":") or t.startswith(".") or not t:
            self.mn = "label" if t.endswith(":") else "directive"
            self.ops = []
            self.mods = ""
            self.w = set()
            self.r = set()
            self.cls = "label" if t.endswith(":") else "none"
            self.states = 0
            return
        parts = t.split(None, 1)
        self.mn = parts[0]
        rest = parts[1] if len(parts) > 1 else ""
        ops, depth, cur = [], 0, ""
        for ch in rest:
            if ch == "[":
                depth += 1
            if ch == "]":
                depth -= 1
            if ch == "," and depth == 0:
                ops.append(cur.strip())
                cur = ""
            else:
                cur += ch
        if cur.strip():
            ops.append(cur.strip())
        mods = ""
        if ops:
            last = ops[-1].split(None, 1)
            ops[-1] = last[0]
            mods = last[1] if len(last) > 1 else ""
        self.ops = ops
        self.mods = mods
        self._classify()

    def _classify(self):
        mn, ops = self.mn, self.ops
        R = [regs_of(o) for o in ops]
        allr = set().union(*R) if R else set()
        w, r = set(), set()
        cls = "other"
        if mn == "s_nop":
            self.states = int(ops[0]) + 1
            cls = "salu"
        elif mn.startswith("v_mfma"):
            cls = "mfma"
            w = R[0]
            r = R[1] | R[2] | R[3]
        elif mn.startswith("v_cmp"):
            cls = "valu"
            w = R[0]
            r = set().union(*R[1:])
        elif mn in ("v_readfirstlane_b32", "v_readlane_b32"):
            cls = "valu"
            w = R[0]
            r = set().union(*R[1:])
        elif mn.startswith("v_"):
            cls = "valu"
            w = set(R[0])
            r = set().union(*R[1:]) if len(R) > 1 else set()
            base = mn.replace("_e32", "").replace("_e64", "").replace("_dpp", "")
            if base in ("v_fmac_f32", "v_dot2c_f32_bf16", "v_writelane_b32") or base.startswith("v_permlane"):
                r |= R[0]
            if base.startswith("v_permlane"):
                w |= R[1]
            if base in ("v_add_co_u32", "v_addc_co_u32", "v_sub_co_u32", "v_subb_co_u32", "v_subrev_co_u32"):
                w |= R[1]
                r = set().union(*R[2:])
            if base == "v_cndmask_b32" and len(ops) == 3:
                r |= {("s", "vcc")}
            if "dpp" in mn or "quad_perm" in self.mods or "row_" in self.mods:
                r |= R[0]
        elif mn.startswith("ds_read") or mn.startswith("ds_bpermute") or mn.startswith("ds_swizzle"):
            cls = "ds"
            w = R[0]
            r = set().union(*R[1:])
        elif mn.startswith("ds_"):
            cls = "ds"
            r = allr
        elif mn.startswith("buffer_load") or mn.startswith("global_load"):
            cls = "vmem"
            if "lds" in self.mods.split() or (ops and ops[-1] == "lds"):
                r = allr | {("s", "m0")}
            else:
                w = R[0]
                r = set().union(*R[1:])
        elif mn.startswith("buffer_atomic") or mn.startswith("global_atomic"):
            cls = "vmem"
            r = allr
            if "sc0" in self.mods.split():
                w = R[0]
        elif mn.startswith("buffer_store") or mn.startswith("global_store"):
            cls = "vmem"
            r = allr
        elif mn.startswith("buffer_") :
            cls = "vmem"
        elif mn.startswith("s_load") or mn.startswith("s_memrealtime") or mn.startswith("s_memtime"):
            cls = "smem"
            w = R[0]
            r = set().union(*R[1:]) if len(R) > 1 else set()
        elif mn.startswith("s_cbranch") or mn == "s_branch":
            cls = "branch"
        elif mn.startswith("s_cmp") or mn.startswith("s_bitcmp"):
            cls = "salu"
            r = allr
        elif mn in ("s_waitcnt", "s_barrier", "s_endpgm", "s_sleep", "s_setprio"):
            cls = "salu"
        elif mn.startswith("s_"):
            cls = "salu"
            w = R[0] if R else set()
            r = set().union(*R[1:]) if len(R) > 1 else set()
            if "saveexec" in mn:
                w = w | {("s", "exec")}
        self.w, self.r, self.cls = w, r, cls

    def is_trans(self):
        return self.mn.replace("_e32", "").replace("_e64", "") in TRANS

    def is_dpp(self):
        return "dpp" in self.mn or "quad_perm" in self.mods or "row_" in self.mods

    def mfma_passes(self):
        return 8 if "32x32" in self.mn else 4

    def wide_store_data(self):
        if self.mn in ("buffer_store_dwordx4", "buffer_store_dwordx3"):
            return regs_of(self.ops[0])
        if self.mn in ("global_store_dwordx4", "global_store_dwordx3"):
            return regs_of(self.ops[1])
        return set()


def need_states(p, c):
    n = 0
    pv = {x for x in p.w if x[0] in "va"}
    ps = {x for x in p.w if x[0] == "s"}
    if p.cls == "valu":
        if c.cls == "mfma" and pv & c.r:
            n = max(n, 2)
        if c.cls == "valu":
            if p.is_trans() and pv & c.r:
                n = max(n, 1)
            if c.is_dpp() and pv & c.r:
                n = max(n, 2)
            if c.mn.startswith("v_permlane") and pv & (c.r | c.w):
                n = max(n, 2)
            if c.mn in ("v_readfirstlane_b32", "v_readlane_b32") and pv & c.r:
                n = max(n, 1)
            if ps & c.r:
                n = max(n, 4 if c.mn in ("v_readlane_b32", "v_writelane_b32") else 2)
        if p.is_trans() and c.cls in ("vmem", "ds") and pv & c.r:
            n = max(n, 1)
        if c.cls == "vmem" and ps & c.r:
            n = max(n, 5)
        if c.cls in ("salu", "branch", "smem") and ps & c.r:
            n = max(n, 1)
    if p.mn.startswith("v_dot") and pv & (c.r | c.w):
        same = c.mn.replace("_e32", "") == p.mn.replace("_e32", "")
        if same:
            srcab = regs_of(c.ops[1]) | regs_of(c.ops[2])
            if pv & srcab:
                n = max(n, 3)
        else:
            n = max(n, 3)
    if p.cls == "mfma":
        ps_ = p.mfma_passes()
        big = {4: 8, 8: 12}[ps_]
        if c.cls == "mfma":
            A = regs_of(c.ops[1]) | regs_of(c.ops[2])
            C = regs_of(c.ops[3])
            if pv & A:
                n = max(n, big)
            if pv & C:
                if not (C == pv and c.mfma_passes() == ps_):
                    n = max(n, {4: 6, 8: 10}[ps_])
            if pv & c.w and not (pv & C):
                n = max(n, big)
        elif c.cls in ("valu", "vmem", "ds"):
            if pv & (c.r | c.w):
                n = max(n, big)
        if c.cls == "valu":
            C = regs_of(p.ops[3])
            if C & c.w:
                n = max(n, {4: 3, 8: 7}[ps_])
    if p.cls == "salu" and ("s", "m0") in p.w:
        if ("s", "m0") in c.r:
            n = max(n, 1)
    ws = p.wide_store_data()
    if ws and (ws & c.w) and c.cls in ("valu", "ds", "vmem", "mfma"):
        n = max(n, 2)
    return n


class Asm:
    def __init__(self):
        self.ins = []
        self.vm = []
        self.lg = []

    def __call__(self, text, tag=None, cond=False):
        for line in text.split("\n"):
            line = line.strip()
            if not line:
                continue
            i = Ins(line)
            i.tag = tag
            i.cond = cond
            self.ins.append(i)
            if i.cls == "vmem" and not i.mn.startswith("buffer_inv") and not i.mn.startswith("buffer_wb"):
                self.vm.append((tag, cond))
            elif i.cls == "vmem":
                self.vm.append((tag, cond))
            if i.cls == "ds":
                self.lg.append((tag, cond))
        return self

    def label(self, name):
        self(name + ":")

    def comment(self, t):
        i = Ins("")
        i.text = "; " + t
        self.ins.append(i)

    @staticmethod
    def _count_after(lst, tag):
        last = -1
        for k, (t, c) in enumerate(lst):
            if t == tag:
                last = k
        assert last >= 0, f"tag {tag} not found"
        return sum(1 for (t, c) in lst[last + 1:] if not c)

    def wait(self, vm=None, lg=None):
        parts = []
        if vm is not None:
            n = 0 if vm == "all" else min(63, self._count_after(self.vm, vm))
            parts.append(f"vmcnt({n})")
        if lg is not None:
            n = 0 if lg == "all" else min(15, self._count_after(self.lg, lg))
            parts.append(f"lgkmcnt({n})")
        self("s_waitcnt " + " ".join(parts))

    def reset_counts(self):
        self.vm = []
        self.lg = []

    def pad_hazards(self, window=24):
        src = self.ins
        branches = {}
        for k, i in enumerate(src):
            if i.cls == "branch":
                branches.setdefault(i.ops[0], []).append(k)

        def scan(lst, start, dist, c, depth):
            need = 0
            k = start - 1
            while k >= 0 and dist < window:
                p = lst[k]
                if p.cls == "label":
                    name = p.text.strip()[:-1]
                    if depth < 4:
                        for b in branches.get(name, []):
                            need = max(need, scan(src, b, dist + 1, c, depth + 1))
                    k -= 1
                    continue
                if p.states == 0:
                    k -= 1
                    continue
                if p.mn in ("s_branch", "s_endpgm") and not (k == start - 1 and lst is src and False):
                    return need
                n = need_states(p, c)
                if n > dist:
                    need = max(need, n - dist)
                dist += p.states
                k -= 1
            return need

        out = []
        for c in src:
            if c.states == 0:
                out.append(c)
                continue
            need = scan(out, len(out), 0, c, 0)
            while need > 0:
                k = min(need, 16)
                out.append(Ins(f"s_nop {k - 1}"))
                need -= k
            out.append(c)
        self.ins = out

    def text(self):
        lines = []
        for i in self.ins:
            t = i.text
            if t.endswith(":") or t.startswith("."):
                lines.append(t)
            else:
                lines.append("    " + t)
        return "\n".join(lines) + "\n"

    def count(self):
        return sum(1 for i in self.ins if i.states > 0)
```

```python
from asmgen import Asm, v, a, s

NAME = "recurrent_scan__ssm_conv_s5__mixer_channel_mlp__prompt"

L, D, P, F = 2048, 448, 448, 1792
BLK_BYTES = 84 * 4096
HID0 = 0
WF0 = 32 * BLK_BYTES
E0 = WF0 + 7 * BLK_BYTES
E_BYTES = 224 * 1024
ST0 = E0 + E_BYTES
ST_BYTES = 2048 * 8
FLAG0 = ST0 + ST_BYTES
WS_BYTES = 268435456

KA = dict(x=0, lre=8, lim=16, bre=24, bim=32, cre=40, cim=48, ldt=56, dskip=64, bx=72,
          w1=80, b1=88, w2=96, b2=104, out=112, dbg=120, ws=128)

S_X, S_LRE, S_LIM, S_BRE, S_BIM, S_CRE, S_CIM, S_LDT = 4, 6, 8, 10, 12, 14, 16, 18
S_DSK, S_BX, S_W1, S_B1, S_W2, S_B2, S_OUT, S_DBG = 20, 22, 24, 26, 28, 30, 32, 34
S_WS = 36

LOG2E = 1.4426950408889634


def fbits(x):
    import struct
    return "0x%08x" % struct.unpack("<I", struct.pack("<f", x))[0]


def load_kernargs(A):
    A("s_load_dwordx16 s[4:19], s[0:1], 0")
    A("s_load_dwordx16 s[20:35], s[0:1], 64")
    A("s_load_dwordx2 s[36:37], s[0:1], 128")


def make_srd(A, dst, ptr, nbytes, base_off=0):
    if base_off == 0:
        A(f"s_mov_b32 s{dst}, s{ptr}")
        A(f"s_mov_b32 s{dst+1}, s{ptr+1}")
    elif base_off > 0:
        A(f"s_add_u32 s{dst}, s{ptr}, {base_off}")
        A(f"s_addc_u32 s{dst+1}, s{ptr+1}, 0")
    else:
        A(f"s_sub_u32 s{dst}, s{ptr}, {-base_off}")
        A(f"s_subb_u32 s{dst+1}, s{ptr+1}, 0")
    A(f"s_mov_b32 s{dst+2}, {nbytes}")
    A(f"s_mov_b32 s{dst+3}, 0x00020000")


def decode_ms(A, s_m, s_s, t0, t1):
    A(f"s_lshr_b32 s{t0}, s2, 3")
    A(f"s_mul_i32 s{t1}, s{t0}, 37")
    A(f"s_lshr_b32 s{t1}, s{t1}, 8")
    A(f"s_mul_i32 s{s_s}, s{t1}, 7")
    A(f"s_sub_u32 s{s_s}, s{t0}, s{s_s}")
    A(f"s_lshl_b32 s{t1}, s{t1}, 3")
    A(f"s_and_b32 s{s_m}, s2, 7")
    A(f"s_add_u32 s{s_m}, s{s_m}, s{t1}")


def kernel_header(name):
    return f""".globl {name}
.p2align 8
.type {name},@function
{name}:
"""


def kernel_desc(name, vgprs, sgprs, accum):
    return f""".amdhsa_kernel {name}
  .amdhsa_next_free_vgpr {vgprs}
  .amdhsa_next_free_sgpr {sgprs}
  .amdhsa_accum_offset {accum}
  .amdhsa_group_segment_fixed_size 0
  .amdhsa_kernarg_size 136
  .amdhsa_user_sgpr_count 2
  .amdhsa_user_sgpr_kernarg_segment_ptr 1
  .amdhsa_system_sgpr_workgroup_id_x 1
  .amdhsa_float_denorm_mode_32 3
.end_amdhsa_kernel
"""


def cmul(A, dst, x, y, tmp):
    A(f"v_pk_mul_f32 {v(tmp,2)}, {v(x,2)}, {v(y,2)} op_sel:[0,0] op_sel_hi:[1,0]")
    A(f"v_pk_fma_f32 {v(dst,2)}, {v(x,2)}, {v(y,2)}, {v(tmp,2)} op_sel:[1,1,0] op_sel_hi:[0,1,1] neg_lo:[0,1,0]")


def cfma(A, dst, x, y, z, tmp):
    A(f"v_pk_fma_f32 {v(tmp,2)}, {v(x,2)}, {v(y,2)}, {v(z,2)} op_sel:[0,0,0] op_sel_hi:[1,0,1]")
    A(f"v_pk_fma_f32 {v(dst,2)}, {v(x,2)}, {v(y,2)}, {v(tmp,2)} op_sel:[1,1,0] op_sel_hi:[0,1,1] neg_lo:[0,1,0]")


def bf16r_pair(A, lo, hi, tmp):
    A(f"v_cvt_pk_bf16_f32 v{tmp}, v{lo}, v{hi}")
    A(f"v_lshlrev_b32 v{lo}, 16, v{tmp}")
    A(f"v_and_b32 v{hi}, 0xffff0000, v{tmp}")


def bf16r(A, r, tmp=None):
    A(f"v_cvt_pk_bf16_f32 v{r}, v{r}, v{r}")
    A(f"v_lshlrev_b32 v{r}, 16, v{r}")
```

```python
from common import *

R1_0 = 0
R12_0 = 256
SCR0 = 512
XST = 4608
RING0 = XST + 57344
NSLOT = 6
RING_W = NSLOT * 4096
LDS_K1 = RING0 + 4 * RING_W

S_W = 3
S_M, S_S = 40, 41
SRD_X, SRD_BRE, SRD_BIM, SRD_W1, SRD_WS, SRD_E = 44, 48, 52, 56, 60, 64
T0, T1, T2, T3 = 68, 69, 70, 71
S_RB, S_KC, S_7168 = 78, 79, 80
S_HS = 81

vLane = 0
vS = [16, 17]
vM = [18, 19, 20, 21]
vRS = [22, 23]
vTR = [24, 25, 26, 27]
B1F = 28
PA, PF, P16, P32, P48, P64, P256, PLP = 44, 46, 48, 50, 52, 54, 56, 58
UP = 60
BB = 92
ACCS = 124
ACCM = 156
XR = 156
R12 = 220
NON = 224
RS = 226
EPS = 1e-5


def accS(q, part):
    return ACCS + (q * 2 + part) * 4


def accM(T, q):
    return ACCM + (T * 4 + q) * 4


def XF(ks, q):
    return (ks * 4 + q) * 4


def chunk_dma(A, n):
    slot = n % NSLOT
    out = [f"s_add_u32 m0, s{S_RB}, {slot*4096}"]
    if n < 7:
        out.append(f"s_movk_i32 s{S_KC}, {n*128}")
        out.append(f"buffer_load_dwordx4 v{vS[0]}, s[{SRD_BRE}:{SRD_BRE+3}], s{S_KC} offen lds")
        out.append(f"buffer_load_dwordx4 v{vS[1]}, s[{SRD_BRE}:{SRD_BRE+3}], s{S_KC} offen offset:1024 lds")
        out.append(f"buffer_load_dwordx4 v{vS[0]}, s[{SRD_BIM}:{SRD_BIM+3}], s{S_KC} offen offset:2048 lds")
        out.append(f"buffer_load_dwordx4 v{vS[1]}, s[{SRD_BIM}:{SRD_BIM+3}], s{S_KC} offen offset:3072 lds")
    else:
        ks = n - 7
        out.append(f"s_mov_b32 s{S_KC}, {ks*114688}")
        for jj in range(4):
            off = f" offset:{jj*1024}" if jj else ""
            out.append(f"buffer_load_dwordx4 v{vM[jj]}, s[{SRD_W1}:{SRD_W1+3}], s{S_KC} offen{off} lds")
    return out


def chunk_reads(n):
    slot = n % NSLOT
    buf = BB + (n % 2) * 16
    out = []
    if n < 7:
        for ksub in range(2):
            for part in range(2):
                out.append(f"ds_read_b128 {v(buf+(ksub*2+part)*4,4)}, v{vRS[ksub]} offset:{slot*4096+part*2048}")
    else:
        for T in range(4):
            for hf in range(2):
                out.append(f"ds_read_b64_tr_b16 {v(buf+4*T+2*hf,2)}, v{vTR[T]} offset:{slot*4096+hf*512}")
    return out


def chunk_mfmas(n):
    buf = BB + (n % 2) * 16
    out = []
    if n < 7:
        for ksub in range(2):
            ks = 2 * n + ksub
            for q in range(4):
                for part in range(2):
                    c = "0" if ks == 0 else v(accS(q, part), 4)
                    out.append(f"v_mfma_f32_16x16x32_bf16 {v(accS(q,part),4)}, {a(XF(ks,q),4)}, {v(buf+(ksub*2+part)*4,4)}, {c}")
    else:
        ks = n - 7
        for T in range(4):
            for q in range(4):
                c = "0" if ks == 0 else v(accM(T, q), 4)
                out.append(f"v_mfma_f32_16x16x32_bf16 {v(accM(T,q),4)}, {v(buf+4*T,4)}, {a(XF(ks,q),4)}, {c}")
    return out


def gemm_chunk(A, n, last):
    A.wait(lg=("rd", n))
    mf = chunk_mfmas(n)
    dma = chunk_dma(A, n + NSLOT) if n + NSLOT <= last else []
    k = 0
    for idx in range(8):
        A(mf[idx])
        if idx == 0 and dma:
            A(dma[0]); A(dma[1])
        elif dma and 1 <= idx <= 4:
            A(dma[1 + idx], tag=("dma", n + NSLOT))
    if n + 1 <= last:
        A.wait(vm=("dma", n + 1))
        rds = chunk_reads(n + 1)
    else:
        rds = []
    for idx in range(8, 16):
        A(mf[idx])
        j = idx - 8
        if j < len(rds):
            A(rds[j], tag=("rd", n + 1))


def allgather4(A, src, dst, vwr, vrd):
    A(f"ds_write_b64 v{vwr}, {v(src,2)}")
    A("s_waitcnt lgkmcnt(0)")
    for g in range(4):
        A(f"ds_read_b64 {v(dst+2*g,2)}, v{vrd} offset:{g*128}")
    A("s_waitcnt lgkmcnt(0)")


def build_main(A):
    t = list(range(242, 256))
    vRow8, vC8, vI, vG = 2, 3, 4, 5
    A(f"v_lshrrev_b32 v{vRow8}, 3, v{vLane}")
    A(f"v_and_b32 v{vC8}, 7, v{vLane}")
    A(f"v_and_b32 v{vI}, 15, v{vLane}")
    A(f"v_lshrrev_b32 v{vG}, 4, v{vLane}")
    decode_ms(A, S_M, S_S, T0, T1)
    A(f"s_movk_i32 s{T2}, 896")
    A(f"s_lshl_b32 s{T0}, s{S_M}, 6")
    A(f"s_lshl_b32 s{T1}, s{S_W}, 4")
    A(f"s_add_u32 s{T0}, s{T0}, s{T1}")
    A(f"v_add_u32 v6, s{T0}, v{vRow8}")
    A(f"v_lshlrev_b32 v7, 4, v{vC8}")
    A(f"v_mad_u32_u24 v6, v6, s{T2}, v7")
    A(f"s_lshl_b32 s{T0}, s{S_S}, 6")
    A(f"s_add_u32 s{T0}, s{T0}, s{T1}")
    A(f"v_add_u32 v8, s{T0}, v{vI}")
    A(f"v_lshlrev_b32 v8, 1, v8")
    A(f"v_add_u32 v9, s{T0}, v{vRow8}")
    A(f"v_xor_b32 v7, v{vC8}, v{vRow8}")
    A(f"v_lshlrev_b32 v7, 4, v7")
    A(f"v_mad_u32_u24 v{vS[0]}, v9, s{T2}, v7")
    A(f"v_add_u32 v{vS[1]}, 6144, v{vS[0]}")
    A(f"s_lshl_b32 s{T0}, s{S_S}, 9")
    A(f"s_lshl_b32 s{T1}, s{S_W}, 7")
    A(f"s_add_u32 s{T0}, s{T0}, s{T1}")
    A(f"s_movk_i32 s{T3}, 3584")
    A(f"v_lshrrev_b32 v9, 4, v{vLane}")
    A("v_and_b32 v9, 1, v9")
    A("v_lshlrev_b32 v9, 1, v9")
    A(f"v_xor_b32 v9, v9, v{vC8}")
    A("v_xor_b32 v10, 4, v9")
    A("v_lshlrev_b32 v9, 4, v9")
    A("v_lshlrev_b32 v10, 4, v10")
    A(f"v_mad_u32_u24 v11, v{vRow8}, s{T3}, 0")
    A(f"v_add_u32 v11, s{T0}, v11")
    A(f"v_add_u32 v{vM[0]}, v11, v9")
    A(f"v_add_u32 v{vM[1]}, v11, v10")
    A(f"v_add_u32 v{vM[2]}, {2*27648}, v{vM[0]}")
    A(f"v_add_u32 v{vM[3]}, {3*27648}, v{vM[1]}")
    A(f"v_add_u32 v{vM[1]}, {27648}, v{vM[1]}")
    A(f"v_lshl_add_u32 v12, v{vG}, 3, s{T0}")
    A(f"s_mul_i32 s{S_RB}, s{S_W}, {RING_W}")
    A(f"s_add_u32 s{S_RB}, s{S_RB}, {RING0}")
    A(f"v_and_b32 v9, 7, v{vI}")
    A(f"v_xor_b32 v9, v9, v{vG}")
    A("v_xor_b32 v10, 4, v9")
    A(f"v_lshlrev_b32 v11, 7, v{vI}")
    A(f"v_add_u32 v11, s{S_RB}, v11")
    A(f"v_lshl_add_u32 v{vRS[0]}, v9, 4, v11")
    A(f"v_lshl_add_u32 v{vRS[1]}, v10, 4, v11")
    A(f"v_lshrrev_b32 v9, 2, v{vI}")
    A(f"v_lshl_add_u32 v9, v{vG}, 3, v9")
    A("v_lshlrev_b32 v9, 7, v9")
    A(f"v_add_u32 v9, s{S_RB}, v9")
    A(f"v_and_b32 v10, 3, v{vI}")
    A("v_lshl_add_u32 v9, v10, 3, v9")
    A(f"v_lshrrev_b32 v10, 3, v{vI}")
    A("v_lshlrev_b32 v10, 1, v10")
    A(f"v_and_b32 v11, 1, v{vG}")
    A("v_lshl_or_b32 v10, v11, 2, v10")
    for T in range(4):
        A(f"v_xor_b32 v11, {2*T}, v10")
        A(f"v_lshl_add_u32 v{vTR[T]}, v11, 4, v9")
    A(f"s_movk_i32 s{S_7168}, 7168")
    A("s_waitcnt lgkmcnt(0)")
    make_srd(A, SRD_X, S_X, L * D * 2)
    A(f"global_load_ushort v252, v8, s[{S_LRE}:{S_LRE+1}]", tag="par")
    A(f"global_load_ushort v253, v8, s[{S_LIM}:{S_LIM+1}]", tag="par")
    A(f"global_load_ushort v254, v8, s[{S_LDT}:{S_LDT+1}]", tag="par")
    for rg in range(2):
        for j in range(7):
            so = "0" if rg == 0 else f"s{S_7168}"
            A(f"buffer_load_dwordx4 {v(XR+(rg*7+j)*4,4)}, v6, s[{SRD_X}:{SRD_X+3}], {so} offen offset:{j*128}", tag="x")
    make_srd(A, SRD_BRE, S_BRE, P * D * 2)
    make_srd(A, SRD_BIM, S_BIM, P * D * 2 + 2048, base_off=-2048)
    make_srd(A, SRD_W1, S_W1, D * F * 2)
    make_srd(A, SRD_WS, S_WS, WS_BYTES)
    make_srd(A, SRD_E, S_WS, E_BYTES, base_off=E0)
    for n in range(NSLOT):
        for ins in chunk_dma(A, n):
            A(ins, tag=("dma", n))
    for T in range(4):
        A(f"global_load_dwordx2 {v(242+2*T,2)}, v12, s[{S_B1}:{S_B1+1}] offset:{T*32}", tag="b1")
    A(f"s_or_b32 s{T0}, s2, s{S_W}")
    A(f"s_cmp_lg_u32 s{T0}, 0")
    A("s_cbranch_scc1 K1_NONONCE")
    A("s_memrealtime s[76:77]")
    A("s_waitcnt lgkmcnt(0)")
    A("s_or_b32 s76, s76, 1")
    A("v_mov_b32 v10, s76")
    A("v_mov_b32 v11, s77")
    A("v_mov_b32 v9, 0")
    A("s_mov_b64 exec, 1")
    A(f"global_store_dwordx2 v9, v[10:11], s[{S_DBG}:{S_DBG+1}] sc1", cond=True)
    A("s_mov_b64 exec, -1")
    A.label("K1_NONONCE")

    A.wait(vm="par")
    A("v_lshlrev_b32 v252, 16, v252")
    A("v_lshlrev_b32 v253, 16, v253")
    A("v_lshlrev_b32 v254, 16, v254")
    A(f"v_mul_f32 v254, {fbits(LOG2E)}, v254")
    A("v_exp_f32 v254, v254")
    bf16r(A, 254)
    A("v_mul_f32 v10, v254, v252")
    A("v_mul_f32 v11, v254, v253")
    A(f"v_mul_f32 v10, {fbits(LOG2E)}, v10")
    A(f"v_mul_f32 v11, {fbits(0.15915494309189535)}, v11")
    A("v_exp_f32 v10, v10")
    A("v_rndne_f32 v13, v11")
    A("v_sub_f32 v11, v11, v13")
    A("v_cos_f32 v14, v11")
    A("v_sin_f32 v15, v11")
    A(f"v_mul_f32 v{PA}, v10, v14")
    A(f"v_mul_f32 v{PA+1}, v10, v15")
    A(f"v_add_f32 v10, -1.0, v{PA}")
    A("v_mul_f32 v13, v252, v252")
    A("v_fmac_f32 v13, v253, v253")
    A("v_rcp_f32 v13, v13")
    A(f"v_mul_f32 v14, v10, v252")
    A(f"v_fmac_f32 v14, v{PA+1}, v253")
    A(f"v_mul_f32 v15, v{PA+1}, v252")
    A(f"v_fma_f32 v15, -v10, v253, v15")
    A("v_add_f32 v13, v13, v13")
    A(f"v_mul_f32 v{PF}, v14, v13")
    A(f"v_mul_f32 v{PF+1}, v15, v13")
    cmul(A, 10, PA, PA, 14)
    cmul(A, 12, 10, 10, 14)
    cmul(A, 10, 12, 12, 14)
    cmul(A, P16, 10, 10, 14)
    cmul(A, P32, P16, P16, 14)
    cmul(A, P48, P32, P16, 14)
    cmul(A, P64, P32, P32, 14)
    cmul(A, 10, P64, P64, 14)
    cmul(A, P256, 10, 10, 14)

    A.wait(vm="x")
    ONES = T0
    A(f"s_mov_b32 s{T0}, 0x3f803f80")
    A(f"s_mov_b32 s{T1}, 0x00003f80")
    A(f"s_mov_b32 s{T2}, 0x3f800000")
    SUM = [92, 93]
    A(f"v_mov_b32 v{SUM[0]}, 0")
    A(f"v_mov_b32 v{SUM[1]}, 0")
    for k in range(28):
        for rg in range(2):
            A(f"v_dot2c_f32_bf16 v{SUM[rg]}, s{T0}, v{XR+rg*28+k}")

    def red8(regs):
        for mod in ("quad_perm:[1,0,3,2]", "quad_perm:[2,3,0,1]", "row_half_mirror"):
            for r in regs:
                A(f"v_add_f32_dpp v{r}, v{r}, v{r} {mod} row_mask:0xf bank_mask:0xf")
    red8(SUM)
    NMU = [94, 95]
    for rg in range(2):
        A(f"v_mul_f32 v{NMU[rg]}, {fbits(-1.0/448)}, v{SUM[rg]}")
    SQ = [96, 98]
    for rg in range(2):
        A(f"v_mov_b32 v{SQ[rg]}, 0")
        A(f"v_mov_b32 v{SQ[rg]+1}, 0")
    vXW = 7
    A(f"v_lshrrev_b32 v9, 2, v{vC8}")
    A(f"v_lshlrev_b32 v{vXW}, 12, v9")
    A(f"v_lshrrev_b32 v9, 2, v{vRow8}")
    A(f"v_lshl_add_u32 v{vXW}, v9, 10, v{vXW}")
    A(f"v_and_b32 v9, 3, v{vC8}")
    A(f"v_lshl_add_u32 v{vXW}, v9, 8, v{vXW}")
    A(f"v_and_b32 v9, 3, v{vRow8}")
    A(f"s_lshl_b32 s{T3}, s{S_W}, 2")
    A(f"v_add_u32 v9, s{T3}, v9")
    A(f"v_xor_b32 v9, v9, v{vC8}")
    A(f"v_lshl_add_u32 v{vXW}, v9, 4, v{vXW}")
    CT = [100, 108]
    for j in range(7):
        for rg in range(2):
            base = XR + (rg * 7 + j) * 4
            c = CT[rg]
            for d in range(4):
                A(f"v_dot2_f32_bf16 v{c+2*d}, v{base+d}, s{T1}, v{NMU[rg]}")
                A(f"v_dot2_f32_bf16 v{c+2*d+1}, v{base+d}, s{T2}, v{NMU[rg]}")
            for d in range(4):
                A(f"v_pk_fma_f32 {v(SQ[rg],2)}, {v(c+2*d,2)}, {v(c+2*d,2)}, {v(SQ[rg],2)}")
                A(f"v_cvt_pk_bf16_f32 v{base+d}, v{c+2*d}, v{c+2*d+1}")
            A(f"ds_write_b128 v{vXW}, {v(base,4)} offset:{XST+j*8192+rg*2048}")
    for rg in range(2):
        A(f"v_add_f32 v{SQ[rg]}, v{SQ[rg]}, v{SQ[rg]+1}")
    red8([SQ[0], SQ[1]])
    VV, SD, R1, R12v, MB = [100, 101], [102, 103], [104, 105], [106, 107], [108, 110]
    for rg in range(2):
        A(f"v_mul_f32 v{VV[rg]}, {fbits(1.0/448)}, v{SQ[rg]}")
        A(f"v_mov_b32 v{SD[rg]}, v{VV[rg]}")
        bf16r(A, SD[rg])
        A(f"v_add_f32 v{SD[rg]}, {fbits(EPS)}, v{SD[rg]}")
        bf16r(A, SD[rg])
        A(f"v_sqrt_f32 v{SD[rg]}, v{SD[rg]}")
        bf16r(A, SD[rg])
        A(f"v_rcp_f32 v{R1[rg]}, v{SD[rg]}")
        A(f"v_mul_f32 v{VV[rg]}, v{VV[rg]}, v{R1[rg]}")
        A(f"v_mul_f32 v{VV[rg]}, v{VV[rg]}, v{R1[rg]}")
        bf16r(A, VV[rg])
        A(f"v_add_f32 v{VV[rg]}, {fbits(EPS)}, v{VV[rg]}")
        bf16r(A, VV[rg])
        A(f"v_sqrt_f32 v{VV[rg]}, v{VV[rg]}")
        bf16r(A, VV[rg])
        A(f"v_rcp_f32 v{VV[rg]}, v{VV[rg]}")
        A(f"v_mul_f32 v{R12v[rg]}, v{R1[rg]}, v{VV[rg]}")
        A(f"v_sub_f32 v{MB[rg]}, 0, v{NMU[rg]}")
        bf16r(A, MB[rg])
        A(f"v_mov_b32 v{MB[rg]+1}, v{R1[rg]}")
    A(f"s_lshl_b32 s{T3}, s{S_W}, 4")
    A(f"v_add_u32 v9, s{T3}, v{vRow8}")
    A("v_lshlrev_b32 v10, 2, v9")
    for rg in range(2):
        A(f"ds_write_b32 v10, v{R1[rg]} offset:{R1_0+rg*32}")
        A(f"ds_write_b32 v10, v{R12v[rg]} offset:{R12_0+rg*32}")
    A(f"s_cmp_lg_u32 s{S_S}, 0")
    A("s_cbranch_scc1 K1_NOSTAT")
    A(f"s_lshl_b32 s{T3}, s{S_M}, 6")
    A(f"v_add_u32 v9, s{T3}, v9")
    A("v_lshlrev_b32 v9, 3, v9")
    A(f"s_mov_b32 s{T3}, {ST0}")
    A(f"buffer_store_dwordx2 {v(MB[0],2)}, v9, s[{SRD_WS}:{SRD_WS+3}], s{T3} offen", cond=True)
    A(f"buffer_store_dwordx2 {v(MB[1],2)}, v9, s[{SRD_WS}:{SRD_WS+3}], s{T3} offen offset:64", cond=True)
    A.label("K1_NOSTAT")
    A.wait(vm="b1")
    for T in range(4):
        for d in range(2):
            A(f"v_lshlrev_b32 v{B1F+4*T+2*d}, 16, v{242+2*T+d}")
            A(f"v_and_b32 v{B1F+4*T+2*d+1}, 0xffff0000, v{242+2*T+d}")
    A("s_waitcnt lgkmcnt(0)")
    A("s_barrier")
    A(f"v_xor_b32 v9, v{vI}, v{vG}")
    A("v_xor_b32 v10, 4, v9")
    A(f"v_lshlrev_b32 v11, 8, v{vG}")
    A("v_lshl_add_u32 v9, v9, 4, v11")
    A("v_lshl_add_u32 v10, v10, 4, v11")
    for ks in range(14):
        for q in range(4):
            A(f"ds_read_b128 {a(XF(ks,q),4)}, v{9+(ks&1)} offset:{XST+(ks*4+q)*1024}", tag="xf")
    A(f"v_lshlrev_b32 v11, 6, v{vG}")
    for q in range(4):
        A(f"ds_read_b128 {v(RS+4*q,4)}, v11 offset:{R1_0+q*16}", tag="rs")
    A(f"v_lshrrev_b32 v12, 2, v{vI}")
    A("v_lshlrev_b32 v12, 4, v12")
    A(f"v_and_b32 v13, 3, v{vI}")
    A("v_add_lshl_u32 v12, v12, v13, 2")
    for q in range(4):
        A(f"ds_read_b32 v{R12+q}, v12 offset:{R12_0+q*16}", tag="rs")
    A.wait(vm=("dma", 0))
    for ins in chunk_reads(0):
        A(ins, tag=("rd", 0))
    A("v_mov_b32 v9, 0")
    A(f"global_load_dwordx2 {v(NON,2)}, v9, s[{S_DBG}:{S_DBG+1}] sc1", tag="nonce")

    for n in range(7):
        gemm_chunk(A, n, 20)

    def sel(reg):
        return reg & ~1, reg & 1
    for q in range(4):
        for r in range(4):
            j = 4 * q + r
            rb, rsel = sel(RS + j)
            ub, usel = sel(accS(q, 0) + r)
            wb, wsel = sel(accS(q, 1) + r)
            gh, tt = 242 + 4 * (j & 1), 244 + 4 * (j & 1)
            A(f"v_pk_mul_f32 {v(gh,2)}, {v(PF,2)}, {v(rb,2)} op_sel:[0,{rsel}] op_sel_hi:[1,{rsel}]")
            A(f"v_pk_mul_f32 {v(tt,2)}, {v(ub,2)}, {v(gh,2)} op_sel:[{usel},0] op_sel_hi:[{usel},1]")
            A(f"v_pk_fma_f32 {v(UP+2*j,2)}, {v(wb,2)}, {v(gh,2)}, {v(tt,2)} op_sel:[{wsel},1,0] op_sel_hi:[{wsel},0,1] neg_lo:[0,1,0]")
    E = 242
    cfma(A, E, UP, PA, UP + 2, 244)
    for j in range(2, 16):
        cfma(A, E, E, PA, UP + 2 * j, 244)
    vGW, vGR = 14, 15
    A(f"s_lshl_b32 s{T0}, s{S_W}, 10")
    A(f"s_add_u32 s{T0}, s{T0}, {SCR0}")
    A(f"v_lshl_add_u32 v{vGR}, v{vI}, 3, s{T0}")
    A(f"v_lshl_add_u32 v{vGW}, v{vG}, 7, v{vGR}")
    G4 = 226
    allgather4(A, E, G4, vGW, vGR)
    cfma(A, G4 + 2, G4, P16, G4 + 2, 244)
    cfma(A, G4 + 4, G4 + 2, P16, G4 + 4, 244)
    cfma(A, G4 + 6, G4 + 4, P16, G4 + 6, 244)
    A.wait(vm="nonce")
    A(f"v_cmp_ne_u32 vcc, 0, v{NON}")
    A("s_cbranch_vccnz K1_HAVENONCE")
    A("s_mov_b32 s82, 0x10000")
    A.label("K1_NONCELOOP")
    A("s_sub_u32 s82, s82, 1")
    A("s_cmp_eq_u32 s82, 0")
    A("s_cbranch_scc1 K1_HAVENONCE")
    A("s_sleep 2")
    A("v_mov_b32 v9, 0")
    A(f"global_load_dwordx2 {v(NON,2)}, v9, s[{S_DBG}:{S_DBG+1}] sc1", cond=True)
    A("s_waitcnt vmcnt(0)")
    A(f"v_cmp_ne_u32 vcc, 0, v{NON}")
    A("s_cbranch_vccz K1_NONCELOOP")
    A.label("K1_HAVENONCE")
    A(f"v_mov_b32 v244, v{G4+6}")
    A(f"v_mov_b32 v245, v{G4+7}")
    A(f"v_mov_b32 v246, v{NON}")
    A(f"v_mov_b32 v247, v{NON+1}")
    A(f"s_mul_i32 s{T0}, s{S_M}, 7")
    A(f"s_add_u32 s{T0}, s{T0}, s{S_S}")
    A(f"s_lshl_b32 s{T0}, s{T0}, 10")
    A(f"s_lshl_b32 s{T1}, s{S_W}, 8")
    A(f"s_add_u32 s{T0}, s{T0}, s{T1}")
    A(f"v_lshl_add_u32 v13, v{vI}, 4, s{T0}")
    A("s_mov_b64 exec, 0xffff")
    A(f"buffer_store_dwordx4 v[244:247], v13, s[{SRD_E}:{SRD_E+3}], 0 offen sc1", tag="epub")
    A("s_mov_b64 exec, -1")
    A(f"v_mov_b32 v{PLP}, 0")
    A(f"v_mov_b32 v{PLP+1}, 0")
    A("v_mov_b32 v248, 1.0")
    A("v_mov_b32 v249, 0")
    for k, (pp, aa) in enumerate(((G4, P16), (G4 + 2, P32), (G4 + 4, P48)), start=1):
        A(f"v_cmp_eq_u32 vcc, {k}, v{vG}")
        A(f"v_cndmask_b32 v{PLP}, v{PLP}, v{pp}, vcc")
        A(f"v_cndmask_b32 v{PLP+1}, v{PLP+1}, v{pp+1}, vcc")
        A(f"v_cndmask_b32 v248, v248, v{aa}, vcc")
        A(f"v_cndmask_b32 v249, v249, v{aa+1}, vcc")
    A(f"v_mov_b32 v{P32}, v248")
    A(f"v_mov_b32 v{P32+1}, v249")
    LBA = 226
    NV = 234
    A(f"v_add_u32 v9, 1, v{vG}")
    A("v_mul_u32_u24 v9, 7168, v9")
    A(f"v_sub_u32 v{LBA}, v13, v9")
    for j in range(1, 8):
        A(f"v_subrev_u32 v{LBA+j}, {28672*j}, v{LBA}")
    A(f"s_add_u32 s{T0}, s{S_M}, 3")
    A(f"v_sub_u32 v{NV}, s{T0}, v{vG}")
    A(f"v_lshrrev_b32 v{NV}, 2, v{NV}")

    for n in range(7, 21):
        gemm_chunk(A, n, 20)

    LB = ACCS
    for j in range(8):
        A(f"buffer_load_dwordx4 {v(LB+4*j,4)}, v{LBA+j}, s[{SRD_E}:{SRD_E+3}], 0 offen sc1", tag="lb")

    CG, C1 = 250, 252
    c0 = -2.0 * 0.7978845608028654 * LOG2E
    c1 = c0 * 0.044715
    A(f"v_mov_b32 v{CG}, {fbits(c1)}")
    A(f"v_mov_b32 v{CG+1}, {fbits(c0)}")
    A(f"v_mov_b32 v{C1}, 1.0")
    A(f"v_lshlrev_b32 v12, 4, v{vLane}")
    A(f"s_mul_i32 s{S_HS}, s{S_M}, {BLK_BYTES}")
    A(f"s_lshl_b32 s{T0}, s{S_S}, 3")
    A(f"s_lshl_b32 s{T1}, s{S_W}, 1")
    A(f"s_add_u32 s{T0}, s{T0}, s{T1}")
    A(f"s_lshl_b32 s{T0}, s{T0}, 12")
    A(f"s_add_u32 s{T0}, s{S_HS}, s{T0}")
    A(f"s_add_u32 s{T1}, s{T0}, 4096")
    OUTQ = [236, 240]
    for u in range(2):
        for q in range(4):
            oq = OUTQ[q & 1]
            rb, rsel = sel(R12 + q)
            prs = [(2 * u, 0), (2 * u, 1), (2 * u + 1, 0), (2 * u + 1, 1)]
            zs = [accM(T, q) + 2 * pr for T, pr in prs]
            tmp = [244, 246] * 2
            for h in range(2):
                pp = prs[2 * h:2 * h + 2]
                Z = zs[2 * h:2 * h + 2]
                TT = [244, 246]
                for k in range(2):
                    T, pr = pp[k]
                    A(f"v_pk_fma_f32 {v(Z[k],2)}, {v(Z[k],2)}, {v(rb,2)}, {v(B1F+4*T+2*pr,2)} op_sel:[0,{rsel},0] op_sel_hi:[1,{rsel},1]")
                for k in range(2):
                    A(f"v_pk_mul_f32 {v(TT[k],2)}, {v(Z[k],2)}, {v(Z[k],2)}")
                for k in range(2):
                    A(f"v_pk_fma_f32 {v(TT[k],2)}, {v(TT[k],2)}, {v(CG,2)}, {v(CG,2)} op_sel:[0,0,1] op_sel_hi:[1,0,1]")
                for k in range(2):
                    A(f"v_pk_mul_f32 {v(TT[k],2)}, {v(TT[k],2)}, {v(Z[k],2)}")
                for k in range(2):
                    A(f"v_exp_f32 v{TT[k]}, v{TT[k]}")
                    A(f"v_exp_f32 v{TT[k]+1}, v{TT[k]+1}")
                for k in range(2):
                    A(f"v_pk_add_f32 {v(TT[k],2)}, {v(TT[k],2)}, {v(C1,2)} op_sel_hi:[1,0]")
                for k in range(2):
                    A(f"v_rcp_f32 v{TT[k]}, v{TT[k]}")
                    A(f"v_rcp_f32 v{TT[k]+1}, v{TT[k]+1}")
                for k in range(2):
                    A(f"v_pk_mul_f32 {v(Z[k],2)}, {v(Z[k],2)}, {v(TT[k],2)}")
                for k in range(2):
                    A(f"v_cvt_pk_bf16_f32 v{oq+2*h+k}, v{Z[k]}, v{Z[k]+1}")
            A(f"buffer_store_dwordx4 {v(oq,4)}, v12, s[{SRD_WS}:{SRD_WS+3}], s{T0+u} offen offset:{q*1024}", tag="hst")

    A.wait(vm="lb")
    A("s_mov_b32 s82, 0x10000")
    A.label("K1_LBCHECK")
    A("v_mov_b32 v9, 0")
    for j in range(8):
        A(f"v_cmp_eq_u64 vcc, {v(LB+4*j+2,2)}, {v(NON,2)}")
        A("v_addc_co_u32 v9, vcc, 0, v9, vcc")
    A(f"v_cmp_ne_u32 vcc, v9, v{NV}")
    A("s_cbranch_vccz K1_LBDONE")
    A("s_sub_u32 s82, s82, 1")
    A("s_cmp_eq_u32 s82, 0")
    A("s_cbranch_scc1 K1_LBDONE")
    A("s_sleep 2")
    for j in range(8):
        A(f"buffer_load_dwordx4 {v(LB+4*j,4)}, v{LBA+j}, s[{SRD_E}:{SRD_E+3}], 0 offen sc1", cond=True)
    A("s_waitcnt vmcnt(0)")
    A("s_branch K1_LBCHECK")
    A.label("K1_LBDONE")
    H = 242
    cfma(A, H, LB + 28, P256, LB + 24, 244)
    for j in range(5, -1, -1):
        cfma(A, H, H, P256, LB + 4 * j, 244)
    allgather4(A, H, G4, vGW, vGR)
    cfma(A, H, G4 + 6, P64, G4 + 4, 244)
    cfma(A, H, H, P64, G4 + 2, 244)
    cfma(A, H, H, P64, G4, 244)
    cfma(A, H, H, P32, PLP, 244)
    prev = H
    for j in range(16):
        cfma(A, UP + 2 * j, prev, PA, UP + 2 * j, 244)
        prev = UP + 2 * j
    A(f"v_lshlrev_b32 v9, 10, v{vG}")
    A(f"v_lshl_add_u32 v9, v{vI}, 2, v9")
    A(f"v_add_u32 v9, s{S_RB}, v9")
    for j in range(16):
        A(f"v_cvt_pk_bf16_f32 v{LB+j}, v{UP+2*j}, -v{UP+2*j+1}")
        A(f"ds_write_b32 v9, v{LB+j} offset:{j*64}")
    A(f"v_lshrrev_b32 v10, 2, v{vI}")
    A("v_lshlrev_b32 v10, 4, v10")
    A(f"v_and_b32 v11, 3, v{vI}")
    A("v_add_lshl_u32 v10, v10, v11, 6")
    A(f"v_lshl_add_u32 v10, v{vG}, 4, v10")
    A(f"v_add_u32 v10, s{S_RB}, v10")
    A("s_waitcnt lgkmcnt(0)")
    for q in range(4):
        A(f"ds_read_b128 {v(LB+16+4*q,4)}, v10 offset:{q*256}", tag=("tq", q))
    A(f"s_lshl_b32 s{T0}, s{S_S}, 2")
    A(f"s_add_u32 s{T0}, s{T0}, s{S_W}")
    A(f"s_add_u32 s{T0}, s{T0}, 56")
    A(f"s_lshl_b32 s{T0}, s{T0}, 12")
    A(f"s_add_u32 s{T0}, s{S_HS}, s{T0}")
    for q in range(4):
        A.wait(lg=("tq", q))
        A(f"buffer_store_dwordx4 {v(LB+16+4*q,4)}, v12, s[{SRD_WS}:{SRD_WS+3}], s{T0} offen offset:{q*1024}")
    A("s_endpgm")


def build_helper(A):
    SRD_W2, SRD_CRE, SRD_CIM, SRD_WSH = 44, 48, 52, 56
    HW = 40
    vRow8, vC8, vI, vG = 2, 3, 4, 5
    A.label("K1_HELPER")
    A.reset_counts()
    A(f"v_lshrrev_b32 v{vRow8}, 3, v{vLane}")
    A(f"v_and_b32 v{vC8}, 7, v{vLane}")
    A(f"v_and_b32 v{vI}, 15, v{vLane}")
    A(f"v_lshrrev_b32 v{vG}, 4, v{vLane}")
    A(f"s_sub_u32 s{HW}, s2, 224")
    A(f"s_lshl_b32 s{HW}, s{HW}, 2")
    A(f"s_add_u32 s{HW}, s{HW}, s{S_W}")
    A(f"v_lshrrev_b32 v6, 1, v{vRow8}")
    A("v_lshlrev_b32 v6, 1, v6")
    A(f"v_xor_b32 v6, v6, v{vC8}")
    A("v_lshlrev_b32 v6, 4, v6")
    A("s_movk_i32 s68, 896")
    A(f"v_mad_u32_u24 v6, v{vRow8}, s68, v6")
    A(f"s_lshl_b32 s69, s{S_W}, 14")
    A(f"v_lshrrev_b32 v9, 2, v{vI}")
    A(f"v_lshl_add_u32 v9, v{vG}, 2, v9")
    A("v_lshlrev_b32 v9, 7, v9")
    A("v_add_u32 v9, s69, v9")
    A(f"v_and_b32 v10, 3, v{vI}")
    A("v_lshl_add_u32 v9, v10, 3, v9")
    A(f"v_and_b32 v10, 1, v{vG}")
    A("v_lshlrev_b32 v10, 1, v10")
    A(f"v_lshrrev_b32 v11, 3, v{vI}")
    A("v_or_b32 v10, v10, v11")
    A("v_lshlrev_b32 v10, 1, v10")
    for nt in range(4):
        A(f"v_xor_b32 v11, {2*nt}, v10")
        A(f"v_lshl_add_u32 v{12+nt}, v11, 4, v9")
    A(f"v_lshlrev_b32 v7, 4, v{vLane}")
    A(f"v_lshlrev_b32 v8, 3, v{vG}")
    A(f"v_mad_u32_u24 v8, v{vI}, s68, v8")
    A("s_waitcnt lgkmcnt(0)")
    make_srd(A, SRD_W2, S_W2, F * D * 2)
    make_srd(A, SRD_CRE, S_CRE, D * P * 2)
    make_srd(A, SRD_CIM, S_CIM, D * P * 2)
    make_srd(A, SRD_WSH, S_WS, WS_BYTES)
    OUTM = [82, 83, 84, 85]
    OUTS = [86, 87]

    def mlp_item(t):
        A(f"s_add_u32 s70, s{HW}, {128*t}")
        A("s_mul_i32 s71, s70, 1171")
        A("s_lshr_b32 s71, s71, 16")
        A("s_mul_i32 s72, s71, 56")
        A("s_sub_u32 s72, s70, s72")
        A(f"s_mul_i32 s73, s71, {BLK_BYTES}")
        A("s_lshl_b32 s74, s72, 12")
        A("s_add_u32 s73, s73, s74")
        A(f"s_add_u32 s{OUTM[t]}, s73, {WF0}")
        A("s_mul_i32 s72, s72, 28672")
        A("s_lshl_b32 s71, s71, 7")
        A("s_add_u32 s72, s72, s71")
        A(f"s_add_u32 m0, s69, {t*4096}")
        for jj in range(4):
            off = f" offset:{jj*1024}" if jj else ""
            A(f"buffer_load_dwordx4 v6, s[{SRD_W2}:{SRD_W2+3}], s72 offen{off} lds")
            if jj < 3:
                A("s_add_u32 s72, s72, 6144")

    def ssm_item(t):
        A(f"s_add_u32 s70, s{HW}, {128*t}")
        A("s_mul_i32 s71, s70, 2341")
        A("s_lshr_b32 s71, s71, 16")
        A("s_mul_i32 s72, s71, 28")
        A("s_sub_u32 s72, s70, s72")
        A(f"s_mul_i32 s73, s71, {BLK_BYTES}")
        A("s_add_u32 s74, s72, 56")
        A("s_lshl_b32 s74, s74, 12")
        A("s_add_u32 s73, s73, s74")
        A(f"s_add_u32 s{OUTS[t]}, s73, {WF0}")
        A(f"s_mul_i32 s71, s71, {64*896}")
        A("s_lshl_b32 s72, s72, 5")
        A("s_add_u32 s72, s72, s71")
        for nt in range(4):
            A(f"buffer_load_dwordx2 {v(32+t*16+nt*4,2)}, v8, s[{SRD_CRE}:{SRD_CRE+3}], s72 offen")
            A(f"buffer_load_dwordx2 {v(32+t*16+nt*4+2,2)}, v8, s[{SRD_CIM}:{SRD_CIM+3}], s72 offen")
            if nt < 3:
                A(f"s_add_u32 s72, s72, {16*896}")

    for t in range(3):
        mlp_item(t)
    ssm_item(0)
    A(f"s_cmp_ge_u32 s{HW}, 8")
    A("s_cbranch_scc1 K1H_NO3")
    mlp_item(3)
    A.label("K1H_NO3")
    A(f"s_cmp_ge_u32 s{HW}, 68")
    A("s_cbranch_scc1 K1H_NOS1")
    ssm_item(1)
    A.label("K1H_NOS1")
    A("s_waitcnt vmcnt(0)")
    A("s_mov_b32 s75, 0x05040100")
    A("s_mov_b32 s76, 0x07060302")

    def mlp_out(t):
        for nt in range(4):
            for hf in range(2):
                A(f"ds_read_b64_tr_b16 {v(64+nt*4+2*hf,2)}, v{12+nt} offset:{t*4096+hf*2048}")
        A("s_waitcnt lgkmcnt(0)")
        for nt in range(4):
            A(f"buffer_store_dwordx4 {v(64+nt*4,4)}, v7, s[{SRD_WSH}:{SRD_WSH+3}], s{OUTM[t]} offen offset:{nt*1024}")
        A("s_nop 1")

    def ssm_out(t):
        for nt in range(4):
            b = 32 + t * 16 + nt * 4
            o = 80 + nt * 4
            A(f"v_perm_b32 v{o}, v{b+2}, v{b}, s75")
            A(f"v_perm_b32 v{o+1}, v{b+2}, v{b}, s76")
            A(f"v_perm_b32 v{o+2}, v{b+3}, v{b+1}, s75")
            A(f"v_perm_b32 v{o+3}, v{b+3}, v{b+1}, s76")
            A(f"buffer_store_dwordx4 {v(o,4)}, v7, s[{SRD_WSH}:{SRD_WSH+3}], s{OUTS[t]} offen offset:{nt*1024}")
        A("s_nop 1")

    for t in range(3):
        mlp_out(t)
    ssm_out(0)
    A(f"s_cmp_ge_u32 s{HW}, 8")
    A("s_cbranch_scc1 K1H_NO3B")
    mlp_out(3)
    A.label("K1H_NO3B")
    A(f"s_cmp_ge_u32 s{HW}, 68")
    A("s_cbranch_scc1 K1H_NOS1B")
    ssm_out(1)
    A.label("K1H_NOS1B")
    A("s_endpgm")


def build_k1(name):
    A = Asm()
    A("s_cmp_ge_u32 s2, 256")
    A("s_cbranch_scc1 K1_EXIT")
    load_kernargs(A)
    A("v_lshrrev_b32 v1, 6, v0")
    A("v_and_b32 v0, 63, v0")
    A(f"v_readfirstlane_b32 s{S_W}, v1")
    A("s_cmp_ge_u32 s2, 224")
    A("s_cbranch_scc1 K1_HELPER")
    build_main(A)
    build_helper(A)
    A.label("K1_EXIT")
    A("s_endpgm")
    A.pad_hazards()
    return kernel_header(name) + A.text(), kernel_desc(name, 512, 96, 256), A
```

```python
from common import *

NBUF = 6
ACCM, ACCS = 128, 192
PX, PB2, PDS, PST = 192, 200, 208, 216


def acc(base, nt, ql):
    return base + (nt * 4 + ql) * 4


def phase2_setup_addr(A, vH, vW, s_w, sc):
    pass


def build_k2(name):
    A = Asm()
    S_M, S_S, S_W = 40, 41, 3
    SRD_WS, SRD_X, SRD_OUT = 44, 48, 52
    sHm, sWm, sHs, sWs = 56, 57, 58, 59
    T0, T1 = 60, 61
    vH = [1, 2, 3, 4]
    vW = 5
    vTok, vXo, vPo = 6, 7, 8

    A("s_cmp_ge_u32 s2, 224")
    A("s_cbranch_scc1 K2_END")
    load_kernargs(A)
    A("v_lshrrev_b32 v1, 6, v0")
    A("v_and_b32 v0, 63, v0")
    A(f"v_readfirstlane_b32 s{S_W}, v1")
    decode_ms(A, S_M, S_S, T0, T1)
    A(f"v_lshlrev_b32 v{vW}, 4, v0")
    for ql in range(4):
        A(f"s_add_u32 s{T0}, s{S_W}, {ql}")
        A(f"s_and_b32 s{T0}, s{T0}, 3")
        A(f"s_lshl_b32 s{T0}, s{T0}, 10")
        A(f"v_add_u32 v{vH[ql]}, s{T0}, v{vW}")
    A(f"s_mul_i32 s{sHm}, s{S_M}, {BLK_BYTES}")
    A(f"s_mul_i32 s{sWm}, s{S_S}, {BLK_BYTES}")
    A(f"s_add_u32 s{sWm}, s{sWm}, {WF0}")
    A(f"s_mul_i32 s{T0}, s{S_W}, {7*4096}")
    A(f"s_add_u32 s{T0}, s{T0}, {56*4096}")
    A(f"s_add_u32 s{sHs}, s{sHm}, s{T0}")
    A(f"s_add_u32 s{sWs}, s{sWm}, s{T0}")
    A(f"s_mul_i32 s{T0}, s{S_W}, {14*4096}")
    A(f"s_add_u32 s{sHm}, s{sHm}, s{T0}")
    A(f"s_add_u32 s{sWm}, s{sWm}, s{T0}")
    A("v_and_b32 v9, 15, v0")
    A("v_lshrrev_b32 v10, 2, v9")
    A("v_lshlrev_b32 v10, 4, v10")
    A("v_and_b32 v9, 3, v9")
    A("v_add_u32 v9, v9, v10")
    A(f"s_lshl_b32 s{T0}, s{S_M}, 6")
    A(f"s_lshl_b32 s{T1}, s{S_W}, 2")
    A(f"s_add_u32 s{T0}, s{T0}, s{T1}")
    A(f"v_add_u32 v{vTok}, s{T0}, v9")
    A("v_lshrrev_b32 v10, 4, v0")
    A(f"s_lshl_b32 s{T0}, s{S_S}, 6")
    A(f"v_lshl_add_u32 v10, v10, 2, s{T0}")
    A(f"v_lshlrev_b32 v{vPo}, 1, v10")
    A(f"s_movk_i32 s{T0}, 896")
    A(f"v_mad_u32_u24 v{vXo}, v{vTok}, s{T0}, v{vPo}")
    A("s_waitcnt lgkmcnt(0)")
    make_srd(A, SRD_WS, S_WS, WS_BYTES)
    make_srd(A, SRD_X, S_X, L * D * 2)
    make_srd(A, SRD_OUT, S_OUT, L * D * 4)

    def issue_loads(i, part=None):
        b = i % NBUF
        sh, sw = (sHm, sWm) if i < 14 else (sHs, sWs)
        out = []
        for nt in range(4):
            out.append(("W", nt, f"buffer_load_dwordx4 {a(32*b+16+4*nt,4)}, v{vW}, s[{SRD_WS}:{SRD_WS+3}], s{sw} offen offset:{nt*1024}"))
        for ql in range(4):
            out.append(("H", ql, f"buffer_load_dwordx4 {a(32*b+4*ql,4)}, v{vH[ql]}, s[{SRD_WS}:{SRD_WS+3}], s{sh} offen"))
        adv = [f"s_add_u32 s{sh}, s{sh}, 4096", f"s_add_u32 s{sw}, s{sw}, 4096"]
        return out, adv

    for i in range(NBUF):
        lds, adv = issue_loads(i)
        for _, _, t in lds:
            A(t, tag=("st", i))
        for t in adv:
            A(t)
    for nt in range(4):
        A(f"buffer_load_dwordx2 {a(PX+2*nt,2)}, v{vXo}, s[{SRD_X}:{SRD_X+3}], 0 offen offset:{nt*32}", tag="par")
    for nt in range(4):
        A(f"global_load_dwordx2 {a(PB2+2*nt,2)}, v{vPo}, s[{S_B2}:{S_B2+1}] offset:{nt*32}", tag="par")
        A(f"global_load_dwordx2 {a(PDS+2*nt,2)}, v{vPo}, s[{S_DSK}:{S_DSK+1}] offset:{nt*32}", tag="par")
    A(f"v_lshlrev_b32 v9, 3, v{vTok}")
    A(f"s_mov_b32 s{T0}, {ST0}")
    A(f"buffer_load_dwordx2 {a(PST,2)}, v9, s[{SRD_WS}:{SRD_WS+3}], s{T0} offen", tag="par")

    for i in range(21):
        b = i % NBUF
        base = ACCM if i < 14 else ACCS
        first = i in (0, 14)
        A.wait(vm=("st", i))
        nxt = i + NBUF
        lds, adv = issue_loads(nxt) if nxt < 21 else ([], [])
        Wl = [t for k, _, t in lds if k == "W"]
        Hl = [t for k, _, t in lds if k == "H"]
        for nt in range(4):
            for ql in range(4):
                c = "0" if first else v(acc(base, nt, ql), 4)
                A(f"v_mfma_f32_16x16x32_bf16 {v(acc(base,nt,ql),4)}, {a(32*b+16+4*nt,4)}, {a(32*b+4*ql,4)}, {c}")
                if nt == 3 and Hl:
                    A(Hl[ql], tag=("st", nxt))
            if Wl:
                A(Wl[nt], tag=("st", nxt))
        for t in adv:
            A(t)

    vWr = [None, 9, 10, 11]
    vRd = 12
    for ql in range(1, 4):
        A(f"s_add_u32 s{T0}, s{S_W}, {ql}")
        A(f"s_and_b32 s{T0}, s{T0}, 3")
        A(f"s_mul_i32 s{T0}, s{T0}, {3*8192}")
        A(f"s_add_u32 s{T0}, s{T0}, {(ql-1)*8192}")
        A(f"v_add_u32 v{vWr[ql]}, s{T0}, v{vW}")
    A(f"s_mul_i32 s{T0}, s{S_W}, {3*8192}")
    A(f"v_add_u32 v{vRd}, s{T0}, v{vW}")
    for st, base in ((0, ACCM), (1, ACCS)):
        for ql in range(1, 4):
            for nt in range(4):
                A(f"ds_write_b128 v{vWr[ql]}, {v(acc(base,nt,ql),4)} offset:{(st*4+nt)*1024}")
    A("s_waitcnt lgkmcnt(0)")
    A("s_barrier")
    RB = 32
    for slot in range(3):
        for st in range(2):
            for nt in range(4):
                A(f"ds_read_b128 {v(RB+((slot*8+st*4+nt)*4),4)}, v{vRd} offset:{slot*8192+(st*4+nt)*1024}", tag=("rd", slot, st))
    for slot in range(3):
        for st, base in ((0, ACCM), (1, ACCS)):
            A.wait(lg=("rd", slot, st))
            for nt in range(4):
                r = RB + (slot * 8 + st * 4 + nt) * 4
                d = acc(base, nt, 0)
                A(f"v_pk_add_f32 {v(d,2)}, {v(d,2)}, {v(r,2)}")
                A(f"v_pk_add_f32 {v(d+2,2)}, {v(d+2,2)}, {v(r+2,2)}")
    A.wait(vm="par")
    vX, vB, vD, vSt = 32, 40, 48, 56
    for k in range(8):
        A(f"v_accvgpr_read_b32 v{vX+k}, a{PX+k}")
        A(f"v_accvgpr_read_b32 v{vB+k}, a{PB2+k}")
        A(f"v_accvgpr_read_b32 v{vD+k}, a{PDS+k}")
    A(f"v_accvgpr_read_b32 v{vSt}, a{PST}")
    A(f"v_accvgpr_read_b32 v{vSt+1}, a{PST+1}")
    cN = 58
    A(f"v_mov_b32 v{cN}, {fbits(-LOG2E)}")
    A(f"v_mov_b32 v{cN+1}, 1.0")
    A(f"v_lshlrev_b32 v{vXo}, 1, v{vXo}")
    for nt in range(4):
        O = 96 + nt * 4
        for pr in range(2):
            t = 60 + pr * 16
            x0, b0, d0, z0, e0, tmp = t, t + 2, t + 4, t + 6, t + 8, t + 10
            m0 = acc(ACCM, nt, 0) + 2 * pr
            s0 = acc(ACCS, nt, 0) + 2 * pr
            k = nt * 2 + pr
            A(f"v_lshlrev_b32 v{x0}, 16, v{vX+k}")
            A(f"v_and_b32 v{x0+1}, 0xffff0000, v{vX+k}")
            A(f"v_lshlrev_b32 v{b0}, 16, v{vB+k}")
            A(f"v_and_b32 v{b0+1}, 0xffff0000, v{vB+k}")
            A(f"v_lshlrev_b32 v{d0}, 16, v{vD+k}")
            A(f"v_and_b32 v{d0+1}, 0xffff0000, v{vD+k}")
            bf16r_pair(A, m0, m0 + 1, tmp)
            A(f"v_pk_add_f32 {v(z0,2)}, {v(m0,2)}, {v(b0,2)}")
            bf16r_pair(A, z0, z0 + 1, tmp)
            A(f"v_pk_mul_f32 {v(e0,2)}, {v(z0,2)}, {v(cN,2)} op_sel_hi:[1,0]")
            A(f"v_exp_f32 v{e0}, v{e0}")
            A(f"v_exp_f32 v{e0+1}, v{e0+1}")
            A(f"v_pk_add_f32 {v(b0,2)}, {v(x0,2)}, {v(vSt,2)} op_sel_hi:[1,0] neg_lo:[0,1] neg_hi:[0,1]")
            A(f"v_pk_add_f32 {v(e0,2)}, {v(e0,2)}, {v(cN,2)} op_sel:[0,1] op_sel_hi:[1,1]")
            bf16r_pair(A, b0, b0 + 1, tmp)
            A(f"v_rcp_f32 v{e0}, v{e0}")
            A(f"v_rcp_f32 v{e0+1}, v{e0+1}")
            A(f"v_pk_mul_f32 {v(b0,2)}, {v(b0,2)}, {v(vSt,2)} op_sel:[0,1] op_sel_hi:[1,1]")
            bf16r_pair(A, b0, b0 + 1, tmp)
            A(f"v_pk_mul_f32 {v(z0,2)}, {v(z0,2)}, {v(e0,2)}")
            bf16r_pair(A, z0, z0 + 1, tmp)
            A(f"v_pk_mul_f32 {v(b0,2)}, {v(b0,2)}, {v(d0,2)}")
            bf16r_pair(A, b0, b0 + 1, tmp)
            A(f"v_pk_add_f32 {v(s0,2)}, {v(s0,2)}, {v(b0,2)}")
            A(f"v_pk_fma_f32 {v(O+2*pr,2)}, {v(s0,2)}, {v(z0,2)}, {v(x0,2)}")
        A(f"buffer_store_dwordx4 {v(O,4)}, v{vXo}, s[{SRD_OUT}:{SRD_OUT+3}], 0 offen offset:{nt*64}")
    A.label("K2_END")
    A("s_endpgm")
    A.pad_hazards()
    return kernel_header(name) + A.text(), kernel_desc(name, 512, 96, 256), A
```

```python
import sys
from common import *
import k1, k2

HEADER = open("cdna_kernels/" + NAME + ".s.ref").read().split("; Override launch geometry")[0]

def build_2k():
    n1 = "ssm_mlp_phase1_kernel"
    n2 = "ssm_mlp_phase2_kernel"
    c1, d1, A1 = k1.build_k1(n1)
    c2, d2, A2 = k2.build_k2(n2)
    out = HEADER
    out += f"; @launch kernel={n1} grid=(256,1,1) block=(256,1,1) lds={k1.LDS_K1}\n"
    out += f"; @launch kernel={n2} grid=(224,1,1) block=(256,1,1) lds=98304\n"
    out += '.amdgcn_target "amdgcn-amd-amdhsa--gfx950"\n.text\n'
    out += c1 + c2
    out += '.section .rodata,"a"\n.p2align 6\n' + d1 + ".p2align 6\n" + d2
    print(f"k1: {A1.count()} instructions, k2: {A2.count()} instructions", file=sys.stderr)
    return out

if __name__ == "__main__":
    dst = sys.argv[1] if len(sys.argv) > 1 else "cdna_kernels/" + NAME + ".s"
    open(dst, "w").write(build_2k())
```

```python
from asmgen import Asm, v, a, s

NAME = "recurrent_scan__ssm_conv_s5__mixer_channel_mlp__prompt"

L, D, P, F = 2048, 448, 448, 1792
BLK_BYTES = 84 * 4096
HID0 = 0
WF0 = 32 * BLK_BYTES
E0 = WF0 + 7 * BLK_BYTES
E_BYTES = 224 * 1024
ST0 = E0 + E_BYTES
ST_BYTES = 2048 * 8
FLAG0 = ST0 + ST_BYTES
WS_BYTES = 268435456

KA = dict(x=0, lre=8, lim=16, bre=24, bim=32, cre=40, cim=48, ldt=56, dskip=64, bx=72,
          w1=80, b1=88, w2=96, b2=104, out=112, dbg=120, ws=128)

S_X, S_LRE, S_LIM, S_BRE, S_BIM, S_CRE, S_CIM, S_LDT = 4, 6, 8, 10, 12, 14, 16, 18
S_DSK, S_BX, S_W1, S_B1, S_W2, S_B2, S_OUT, S_DBG = 20, 22, 24, 26, 28, 30, 32, 34
S_WS = 36

LOG2E = 1.4426950408889634


def fbits(x):
    import struct
    return "0x%08x" % struct.unpack("<I", struct.pack("<f", x))[0]


def load_kernargs(A):
    A("s_load_dwordx16 s[4:19], s[0:1], 0")
    A("s_load_dwordx16 s[20:35], s[0:1], 64")
    A("s_load_dwordx2 s[36:37], s[0:1], 128")


def make_srd(A, dst, ptr, nbytes, base_off=0):
    if base_off == 0:
        A(f"s_mov_b32 s{dst}, s{ptr}")
        A(f"s_mov_b32 s{dst+1}, s{ptr+1}")
    elif base_off > 0:
        A(f"s_add_u32 s{dst}, s{ptr}, {base_off}")
        A(f"s_addc_u32 s{dst+1}, s{ptr+1}, 0")
    else:
        A(f"s_sub_u32 s{dst}, s{ptr}, {-base_off}")
        A(f"s_subb_u32 s{dst+1}, s{ptr+1}, 0")
    A(f"s_mov_b32 s{dst+2}, {nbytes}")
    A(f"s_mov_b32 s{dst+3}, 0x00020000")


def decode_ms(A, s_m, s_s, t0, t1):
    A(f"s_lshr_b32 s{t0}, s2, 3")
    A(f"s_mul_i32 s{t1}, s{t0}, 37")
    A(f"s_lshr_b32 s{t1}, s{t1}, 8")
    A(f"s_mul_i32 s{s_s}, s{t1}, 7")
    A(f"s_sub_u32 s{s_s}, s{t0}, s{s_s}")
    A(f"s_lshl_b32 s{t1}, s{t1}, 3")
    A(f"s_and_b32 s{s_m}, s2, 7")
    A(f"s_add_u32 s{s_m}, s{s_m}, s{t1}")


def kernel_header(name):
    return f""".globl {name}
.p2align 8
.type {name},@function
{name}:
"""


def kernel_desc(name, vgprs, sgprs, accum):
    return f""".amdhsa_kernel {name}
  .amdhsa_next_free_vgpr {vgprs}
  .amdhsa_next_free_sgpr {sgprs}
  .amdhsa_accum_offset {accum}
  .amdhsa_group_segment_fixed_size 0
  .amdhsa_kernarg_size 136
  .amdhsa_user_sgpr_count 2
  .amdhsa_user_sgpr_kernarg_segment_ptr 1
  .amdhsa_system_sgpr_workgroup_id_x 1
  .amdhsa_float_denorm_mode_32 3
.end_amdhsa_kernel
"""


def cmul(A, dst, x, y, tmp):
    A(f"v_pk_mul_f32 {v(tmp,2)}, {v(x,2)}, {v(y,2)} op_sel:[0,0] op_sel_hi:[1,0]")
    A(f"v_pk_fma_f32 {v(dst,2)}, {v(x,2)}, {v(y,2)}, {v(tmp,2)} op_sel:[1,1,0] op_sel_hi:[0,1,1] neg_lo:[0,1,0]")


def cfma(A, dst, x, y, z, tmp):
    A(f"v_pk_fma_f32 {v(tmp,2)}, {v(x,2)}, {v(y,2)}, {v(z,2)} op_sel:[0,0,0] op_sel_hi:[1,0,1]")
    A(f"v_pk_fma_f32 {v(dst,2)}, {v(x,2)}, {v(y,2)}, {v(tmp,2)} op_sel:[1,1,0] op_sel_hi:[0,1,1] neg_lo:[0,1,0]")


def bf16r_pair(A, lo, hi, tmp):
    A(f"v_cvt_pk_bf16_f32 v{tmp}, v{lo}, v{hi}")
    A(f"v_lshlrev_b32 v{lo}, 16, v{tmp}")
    A(f"v_and_b32 v{hi}, 0xffff0000, v{tmp}")


def bf16r(A, r, tmp=None):
    A(f"v_cvt_pk_bf16_f32 v{r}, v{r}, v{r}")
    A(f"v_lshlrev_b32 v{r}, 16, v{r}")


STAMP0 = 16 << 20
STAMPS = False
_stamp_n = [0]

def stamp_reset():
    _stamp_n[0] = 0

def stamp(A):
    if not STAMPS:
        return
    k = _stamp_n[0]
    assert k < 9
    A(f"s_memrealtime s[{84+2*k}:{85+2*k}]")
    _stamp_n[0] += 1

def stamp_flush(A, srd_ws, region, s_w=3):
    if not STAMPS:
        return
    n = _stamp_n[0]
    A("s_waitcnt lgkmcnt(0)")
    A(f"s_cmp_lg_u32 s{s_w}, 0")
    lab = f"STAMP_SKIP_{region}_{id(A)%10000}_{n}"
    A(f"s_cbranch_scc1 {lab}")
    A("v_mov_b32 v1, 0")
    for k in range(n):
        A(f"v_writelane_b32 v1, s{84+2*k}, {k}")
    A("v_mbcnt_lo_u32_b32 v2, -1, 0")
    A("v_mbcnt_hi_u32_b32 v2, -1, v2")
    A("v_lshlrev_b32 v2, 2, v2")
    A("s_lshl_b32 s83, s2, 6")
    A(f"s_add_u32 s83, s83, {STAMP0 + region*65536}")
    A("s_mov_b64 exec, 0xffff")
    A(f"buffer_store_dword v1, v2, s[{srd_ws}:{srd_ws+3}], s83 offen")
    A("s_mov_b64 exec, -1")
    A.label(lab)
```

```python
from common import *
import common

R1_0 = 0
R12_0 = 256
SCR0 = 512
XST = 4608
RING0 = XST + 57344
NSLOT = 6
RING_W = NSLOT * 4096
LDS_K1 = RING0 + 4 * RING_W

S_W = 3
S_M, S_S = 40, 41
SRD_X, SRD_BRE, SRD_BIM, SRD_W1, SRD_WS, SRD_E = 44, 48, 52, 56, 60, 64
T0, T1, T2, T3 = 68, 69, 70, 71
S_RB, S_KC, S_7168 = 78, 79, 80
S_HS = 81

vLane = 0
vS = [16, 17]
vM = [18, 19, 20, 21]
vRS = [22, 23]
vTR = [24, 25, 26, 27]
B1F = 28
PA, PF, P16, P32, P48, P64, P256, PLP = 44, 46, 48, 50, 52, 54, 56, 58
UP = 60
BB = 92
ACCS = 124
ACCM = 156
XR = 156
R12 = 220
NON = 224
RS = 226
EPS = 1e-5


def accS(q, part):
    return ACCS + (q * 2 + part) * 4


def accM(T, q):
    return ACCM + (T * 4 + q) * 4


def XF(ks, q):
    return (ks * 4 + q) * 4


def chunk_dma(A, n):
    slot = n % NSLOT
    out = [f"s_add_u32 m0, s{S_RB}, {slot*4096}"]
    if n < 7:
        out.append(f"s_movk_i32 s{S_KC}, {n*128}")
        out.append(f"buffer_load_dwordx4 v{vS[0]}, s[{SRD_BRE}:{SRD_BRE+3}], s{S_KC} offen lds")
        out.append(f"buffer_load_dwordx4 v{vS[1]}, s[{SRD_BRE}:{SRD_BRE+3}], s{S_KC} offen offset:1024 lds")
        out.append(f"buffer_load_dwordx4 v{vS[0]}, s[{SRD_BIM}:{SRD_BIM+3}], s{S_KC} offen offset:2048 lds")
        out.append(f"buffer_load_dwordx4 v{vS[1]}, s[{SRD_BIM}:{SRD_BIM+3}], s{S_KC} offen offset:3072 lds")
    else:
        ks = n - 7
        out.append(f"s_mov_b32 s{S_KC}, {ks*114688}")
        for jj in range(4):
            off = f" offset:{jj*1024}" if jj else ""
            out.append(f"buffer_load_dwordx4 v{vM[jj]}, s[{SRD_W1}:{SRD_W1+3}], s{S_KC} offen{off} lds")
    return out


def chunk_reads(n):
    slot = n % NSLOT
    buf = BB + (n % 2) * 16
    out = []
    if n < 7:
        for ksub in range(2):
            for part in range(2):
                out.append(f"ds_read_b128 {v(buf+(ksub*2+part)*4,4)}, v{vRS[ksub]} offset:{slot*4096+part*2048}")
    else:
        for T in range(4):
            for hf in range(2):
                out.append(f"ds_read_b64_tr_b16 {v(buf+4*T+2*hf,2)}, v{vTR[T]} offset:{slot*4096+hf*512}")
    return out


def chunk_mfmas(n):
    buf = BB + (n % 2) * 16
    out = []
    if n < 7:
        for ksub in range(2):
            ks = 2 * n + ksub
            for q in range(4):
                for part in range(2):
                    c = "0" if ks == 0 else v(accS(q, part), 4)
                    out.append(f"v_mfma_f32_16x16x32_bf16 {v(accS(q,part),4)}, {a(XF(ks,q),4)}, {v(buf+(ksub*2+part)*4,4)}, {c}")
    else:
        ks = n - 7
        for T in range(4):
            for q in range(4):
                c = "0" if ks == 0 else v(accM(T, q), 4)
                out.append(f"v_mfma_f32_16x16x32_bf16 {v(accM(T,q),4)}, {v(buf+4*T,4)}, {a(XF(ks,q),4)}, {c}")
    return out


def gemm_chunk(A, n, last):
    A.wait(lg=("rd", n))
    mf = chunk_mfmas(n)
    dma = chunk_dma(A, n + NSLOT) if n + NSLOT <= last else []
    k = 0
    for idx in range(8):
        A(mf[idx])
        if idx == 0 and dma:
            A(dma[0]); A(dma[1])
        elif dma and 1 <= idx <= 4:
            A(dma[1 + idx], tag=("dma", n + NSLOT))
    if n + 1 <= last:
        A.wait(vm=("dma", n + 1))
        rds = chunk_reads(n + 1)
    else:
        rds = []
    for idx in range(8, 16):
        A(mf[idx])
        j = idx - 8
        if j < len(rds):
            A(rds[j], tag=("rd", n + 1))


def allgather4(A, src, dst, vwr, vrd):
    A(f"ds_write_b64 v{vwr}, {v(src,2)}")
    A("s_waitcnt lgkmcnt(0)")
    for g in range(4):
        A(f"ds_read_b64 {v(dst+2*g,2)}, v{vrd} offset:{g*128}")
    A("s_waitcnt lgkmcnt(0)")


def build_main(A):
    stamp_reset()
    stamp(A)
    vRow8, vC8, vI, vG = 2, 3, 4, 5
    A(f"v_lshrrev_b32 v{vRow8}, 3, v{vLane}")
    A(f"v_and_b32 v{vC8}, 7, v{vLane}")
    A(f"v_and_b32 v{vI}, 15, v{vLane}")
    A(f"v_lshrrev_b32 v{vG}, 4, v{vLane}")
    decode_ms(A, S_M, S_S, T0, T1)
    A(f"s_movk_i32 s{T2}, 896")
    A(f"s_lshl_b32 s{T0}, s{S_M}, 6")
    A(f"s_lshl_b32 s{T1}, s{S_W}, 4")
    A(f"s_add_u32 s{T0}, s{T0}, s{T1}")
    A(f"v_add_u32 v6, s{T0}, v{vRow8}")
    A(f"v_lshlrev_b32 v7, 4, v{vC8}")
    A(f"v_mad_u32_u24 v6, v6, s{T2}, v7")
    A(f"s_lshl_b32 s{T0}, s{S_S}, 6")
    A(f"s_add_u32 s{T0}, s{T0}, s{T1}")
    A(f"v_add_u32 v8, s{T0}, v{vI}")
    A(f"v_lshlrev_b32 v8, 1, v8")
    A(f"v_add_u32 v9, s{T0}, v{vRow8}")
    A(f"v_xor_b32 v7, v{vC8}, v{vRow8}")
    A(f"v_lshlrev_b32 v7, 4, v7")
    A(f"v_mad_u32_u24 v{vS[0]}, v9, s{T2}, v7")
    A(f"v_add_u32 v{vS[1]}, 6144, v{vS[0]}")
    A(f"s_lshl_b32 s{T0}, s{S_S}, 9")
    A(f"s_lshl_b32 s{T1}, s{S_W}, 7")
    A(f"s_add_u32 s{T0}, s{T0}, s{T1}")
    A(f"s_movk_i32 s{T3}, 3584")
    A(f"v_lshrrev_b32 v9, 4, v{vLane}")
    A("v_and_b32 v9, 1, v9")
    A("v_lshlrev_b32 v9, 1, v9")
    A(f"v_xor_b32 v9, v9, v{vC8}")
    A("v_xor_b32 v10, 4, v9")
    A("v_lshlrev_b32 v9, 4, v9")
    A("v_lshlrev_b32 v10, 4, v10")
    A(f"v_mad_u32_u24 v11, v{vRow8}, s{T3}, 0")
    A(f"v_add_u32 v11, s{T0}, v11")
    A(f"v_add_u32 v{vM[0]}, v11, v9")
    A(f"v_add_u32 v{vM[1]}, v11, v10")
    A(f"v_add_u32 v{vM[2]}, {2*27648}, v{vM[0]}")
    A(f"v_add_u32 v{vM[3]}, {3*27648}, v{vM[1]}")
    A(f"v_add_u32 v{vM[1]}, {27648}, v{vM[1]}")
    A(f"v_lshl_add_u32 v12, v{vG}, 3, s{T0}")
    A(f"s_mul_i32 s{S_RB}, s{S_W}, {RING_W}")
    A(f"s_add_u32 s{S_RB}, s{S_RB}, {RING0}")
    A(f"v_and_b32 v9, 7, v{vI}")
    A(f"v_xor_b32 v9, v9, v{vG}")
    A("v_xor_b32 v10, 4, v9")
    A(f"v_lshlrev_b32 v11, 7, v{vI}")
    A(f"v_add_u32 v11, s{S_RB}, v11")
    A(f"v_lshl_add_u32 v{vRS[0]}, v9, 4, v11")
    A(f"v_lshl_add_u32 v{vRS[1]}, v10, 4, v11")
    A(f"v_lshrrev_b32 v9, 2, v{vI}")
    A(f"v_lshl_add_u32 v9, v{vG}, 3, v9")
    A("v_lshlrev_b32 v9, 7, v9")
    A(f"v_add_u32 v9, s{S_RB}, v9")
    A(f"v_and_b32 v10, 3, v{vI}")
    A("v_lshl_add_u32 v9, v10, 3, v9")
    A(f"v_lshrrev_b32 v10, 3, v{vI}")
    A("v_lshlrev_b32 v10, 1, v10")
    A(f"v_and_b32 v11, 1, v{vG}")
    A("v_lshl_or_b32 v10, v11, 2, v10")
    for T in range(4):
        A(f"v_xor_b32 v11, {2*T}, v10")
        A(f"v_lshl_add_u32 v{vTR[T]}, v11, 4, v9")
    A(f"s_movk_i32 s{S_7168}, 7168")
    A("s_waitcnt lgkmcnt(0)")
    make_srd(A, SRD_X, S_X, L * D * 2)
    A(f"global_load_ushort v252, v8, s[{S_LRE}:{S_LRE+1}]", tag="par")
    A(f"global_load_ushort v253, v8, s[{S_LIM}:{S_LIM+1}]", tag="par")
    A(f"global_load_ushort v254, v8, s[{S_LDT}:{S_LDT+1}]", tag="par")
    for rg in range(2):
        for j in range(7):
            so = "0" if rg == 0 else f"s{S_7168}"
            A(f"buffer_load_dwordx4 {v(XR+(rg*7+j)*4,4)}, v6, s[{SRD_X}:{SRD_X+3}], {so} offen offset:{j*128}", tag="x")
    make_srd(A, SRD_BRE, S_BRE, P * D * 2)
    make_srd(A, SRD_BIM, S_BIM, P * D * 2 + 2048, base_off=-2048)
    make_srd(A, SRD_W1, S_W1, D * F * 2)
    make_srd(A, SRD_WS, S_WS, WS_BYTES)
    make_srd(A, SRD_E, S_WS, E_BYTES, base_off=E0)
    for n in range(NSLOT):
        for ins in chunk_dma(A, n):
            A(ins, tag=("dma", n))
    for T in range(4):
        A(f"global_load_dwordx2 {v(242+2*T,2)}, v12, s[{S_B1}:{S_B1+1}] offset:{T*32}", tag="b1")
    A(f"s_or_b32 s{T0}, s2, s{S_W}")
    A(f"s_cmp_lg_u32 s{T0}, 0")
    A("s_cbranch_scc1 K1_NONONCE")
    A("s_memrealtime s[76:77]")
    A("s_waitcnt lgkmcnt(0)")
    A("s_or_b32 s76, s76, 1")
    A("v_mov_b32 v10, s76")
    A("v_mov_b32 v11, s77")
    A("v_mov_b32 v9, 0")
    A("s_mov_b64 exec, 1")
    A(f"global_store_dwordx2 v9, v[10:11], s[{S_DBG}:{S_DBG+1}] sc1", cond=True)
    A("s_mov_b64 exec, -1")
    A.label("K1_NONONCE")

    A.wait(vm="par")
    A("v_lshlrev_b32 v252, 16, v252")
    A("v_lshlrev_b32 v253, 16, v253")
    A("v_lshlrev_b32 v254, 16, v254")
    A(f"v_mul_f32 v254, {fbits(LOG2E)}, v254")
    A("v_exp_f32 v254, v254")
    bf16r(A, 254)
    A("v_mul_f32 v10, v254, v252")
    A("v_mul_f32 v11, v254, v253")
    A(f"v_mul_f32 v10, {fbits(LOG2E)}, v10")
    A(f"v_mul_f32 v11, {fbits(0.15915494309189535)}, v11")
    A("v_exp_f32 v10, v10")
    A("v_rndne_f32 v13, v11")
    A("v_sub_f32 v11, v11, v13")
    A("v_cos_f32 v14, v11")
    A("v_sin_f32 v15, v11")
    A(f"v_mul_f32 v{PA}, v10, v14")
    A(f"v_mul_f32 v{PA+1}, v10, v15")
    A(f"v_add_f32 v10, -1.0, v{PA}")
    A("v_mul_f32 v13, v252, v252")
    A("v_fmac_f32 v13, v253, v253")
    A("v_rcp_f32 v13, v13")
    A(f"v_mul_f32 v14, v10, v252")
    A(f"v_fmac_f32 v14, v{PA+1}, v253")
    A(f"v_mul_f32 v15, v{PA+1}, v252")
    A(f"v_fma_f32 v15, -v10, v253, v15")
    A("v_add_f32 v13, v13, v13")
    A(f"v_mul_f32 v{PF}, v14, v13")
    A(f"v_mul_f32 v{PF+1}, v15, v13")
    cmul(A, 10, PA, PA, 14)
    cmul(A, 12, 10, 10, 14)
    cmul(A, 10, 12, 12, 14)
    cmul(A, P16, 10, 10, 14)
    cmul(A, P32, P16, P16, 14)
    cmul(A, P48, P32, P16, 14)
    cmul(A, P64, P32, P32, 14)
    cmul(A, 10, P64, P64, 14)
    cmul(A, P256, 10, 10, 14)

    A.wait(vm="x")
    stamp(A)
    ONES = T0
    A(f"s_mov_b32 s{T0}, 0x3f803f80")
    A(f"s_mov_b32 s{T1}, 0x00003f80")
    A(f"s_mov_b32 s{T2}, 0x3f800000")
    SUM = [92, 93]
    A(f"v_mov_b32 v{SUM[0]}, 0")
    A(f"v_mov_b32 v{SUM[1]}, 0")
    for k in range(28):
        for rg in range(2):
            A(f"v_dot2c_f32_bf16 v{SUM[rg]}, s{T0}, v{XR+rg*28+k}")

    def red8(regs):
        for mod in ("quad_perm:[1,0,3,2]", "quad_perm:[2,3,0,1]", "row_half_mirror"):
            for r in regs:
                A(f"v_add_f32_dpp v{r}, v{r}, v{r} {mod} row_mask:0xf bank_mask:0xf")
    red8(SUM)
    NMU = [94, 95]
    for rg in range(2):
        A(f"v_mul_f32 v{NMU[rg]}, {fbits(-1.0/448)}, v{SUM[rg]}")
    SQ = [96, 98]
    for rg in range(2):
        A(f"v_mov_b32 v{SQ[rg]}, 0")
        A(f"v_mov_b32 v{SQ[rg]+1}, 0")
    vXW = 7
    A(f"v_lshrrev_b32 v9, 2, v{vC8}")
    A(f"v_lshlrev_b32 v{vXW}, 12, v9")
    A(f"v_lshrrev_b32 v9, 2, v{vRow8}")
    A(f"v_lshl_add_u32 v{vXW}, v9, 10, v{vXW}")
    A(f"v_and_b32 v9, 3, v{vC8}")
    A(f"v_lshl_add_u32 v{vXW}, v9, 8, v{vXW}")
    A(f"v_and_b32 v9, 3, v{vRow8}")
    A(f"s_lshl_b32 s{T3}, s{S_W}, 2")
    A(f"v_add_u32 v9, s{T3}, v9")
    A(f"v_xor_b32 v9, v9, v{vC8}")
    A(f"v_lshl_add_u32 v{vXW}, v9, 4, v{vXW}")
    CT = [100, 108]
    for j in range(7):
        for rg in range(2):
            base = XR + (rg * 7 + j) * 4
            c = CT[rg]
            for d in range(4):
                A(f"v_dot2_f32_bf16 v{c+2*d}, v{base+d}, s{T1}, v{NMU[rg]}")
                A(f"v_dot2_f32_bf16 v{c+2*d+1}, v{base+d}, s{T2}, v{NMU[rg]}")
            for d in range(4):
                A(f"v_pk_fma_f32 {v(SQ[rg],2)}, {v(c+2*d,2)}, {v(c+2*d,2)}, {v(SQ[rg],2)}")
                A(f"v_cvt_pk_bf16_f32 v{base+d}, v{c+2*d}, v{c+2*d+1}")
            A(f"ds_write_b128 v{vXW}, {v(base,4)} offset:{XST+j*8192+rg*2048}")
    for rg in range(2):
        A(f"v_add_f32 v{SQ[rg]}, v{SQ[rg]}, v{SQ[rg]+1}")
    red8([SQ[0], SQ[1]])
    VV, SD, R1, R12v, MB = [100, 101], [102, 103], [104, 105], [106, 107], [108, 110]
    for rg in range(2):
        A(f"v_mul_f32 v{VV[rg]}, {fbits(1.0/448)}, v{SQ[rg]}")
        A(f"v_mov_b32 v{SD[rg]}, v{VV[rg]}")
        bf16r(A, SD[rg])
        A(f"v_add_f32 v{SD[rg]}, {fbits(EPS)}, v{SD[rg]}")
        bf16r(A, SD[rg])
        A(f"v_sqrt_f32 v{SD[rg]}, v{SD[rg]}")
        bf16r(A, SD[rg])
        A(f"v_rcp_f32 v{R1[rg]}, v{SD[rg]}")
        A(f"v_mul_f32 v{VV[rg]}, v{VV[rg]}, v{R1[rg]}")
        A(f"v_mul_f32 v{VV[rg]}, v{VV[rg]}, v{R1[rg]}")
        bf16r(A, VV[rg])
        A(f"v_add_f32 v{VV[rg]}, {fbits(EPS)}, v{VV[rg]}")
        bf16r(A, VV[rg])
        A(f"v_sqrt_f32 v{VV[rg]}, v{VV[rg]}")
        bf16r(A, VV[rg])
        A(f"v_rcp_f32 v{VV[rg]}, v{VV[rg]}")
        A(f"v_mul_f32 v{R12v[rg]}, v{R1[rg]}, v{VV[rg]}")
        A(f"v_sub_f32 v{MB[rg]}, 0, v{NMU[rg]}")
        bf16r(A, MB[rg])
        A(f"v_mov_b32 v{MB[rg]+1}, v{R1[rg]}")
    A(f"s_lshl_b32 s{T3}, s{S_W}, 4")
    A(f"v_add_u32 v9, s{T3}, v{vRow8}")
    A("v_lshlrev_b32 v10, 2, v9")
    for rg in range(2):
        A(f"ds_write_b32 v10, v{R1[rg]} offset:{R1_0+rg*32}")
        A(f"ds_write_b32 v10, v{R12v[rg]} offset:{R12_0+rg*32}")
    A(f"s_cmp_lg_u32 s{S_S}, 0")
    A("s_cbranch_scc1 K1_NOSTAT")
    A(f"s_lshl_b32 s{T3}, s{S_M}, 6")
    A(f"v_add_u32 v9, s{T3}, v9")
    A("v_lshlrev_b32 v9, 3, v9")
    A(f"s_mov_b32 s{T3}, {ST0}")
    A(f"buffer_store_dwordx2 {v(MB[0],2)}, v9, s[{SRD_WS}:{SRD_WS+3}], s{T3} offen", cond=True)
    A(f"buffer_store_dwordx2 {v(MB[1],2)}, v9, s[{SRD_WS}:{SRD_WS+3}], s{T3} offen offset:64", cond=True)
    A.label("K1_NOSTAT")
    A.wait(vm="b1")
    for T in range(4):
        for d in range(2):
            A(f"v_lshlrev_b32 v{B1F+4*T+2*d}, 16, v{242+2*T+d}")
            A(f"v_and_b32 v{B1F+4*T+2*d+1}, 0xffff0000, v{242+2*T+d}")
    A("s_waitcnt lgkmcnt(0)")
    stamp(A)
    A("s_barrier")
    A(f"v_xor_b32 v9, v{vI}, v{vG}")
    A("v_xor_b32 v10, 4, v9")
    A(f"v_lshlrev_b32 v11, 8, v{vG}")
    A("v_lshl_add_u32 v9, v9, 4, v11")
    A("v_lshl_add_u32 v10, v10, 4, v11")
    for ks in range(14):
        for q in range(4):
            A(f"ds_read_b128 {a(XF(ks,q),4)}, v{9+(ks&1)} offset:{XST+(ks*4+q)*1024}", tag="xf")
    A(f"v_lshlrev_b32 v11, 6, v{vG}")
    for q in range(4):
        A(f"ds_read_b128 {v(RS+4*q,4)}, v11 offset:{R1_0+q*16}", tag="rs")
    A(f"v_lshrrev_b32 v12, 2, v{vI}")
    A("v_lshlrev_b32 v12, 4, v12")
    A(f"v_and_b32 v13, 3, v{vI}")
    A("v_add_lshl_u32 v12, v12, v13, 2")
    for q in range(4):
        A(f"ds_read_b32 v{R12+q}, v12 offset:{R12_0+q*16}", tag="rs")
    A.wait(vm=("dma", 0))
    for ins in chunk_reads(0):
        A(ins, tag=("rd", 0))
    A("v_mov_b32 v9, 0")
    A(f"global_load_dwordx2 {v(NON,2)}, v9, s[{S_DBG}:{S_DBG+1}] sc1", tag="nonce")

    stamp(A)
    for n in range(7):
        gemm_chunk(A, n, 20)

    stamp(A)
    def sel(reg):
        return reg & ~1, reg & 1
    for q in range(4):
        for r in range(4):
            j = 4 * q + r
            rb, rsel = sel(RS + j)
            ub, usel = sel(accS(q, 0) + r)
            wb, wsel = sel(accS(q, 1) + r)
            gh, tt = 242 + 4 * (j & 1), 244 + 4 * (j & 1)
            A(f"v_pk_mul_f32 {v(gh,2)}, {v(PF,2)}, {v(rb,2)} op_sel:[0,{rsel}] op_sel_hi:[1,{rsel}]")
            A(f"v_pk_mul_f32 {v(tt,2)}, {v(ub,2)}, {v(gh,2)} op_sel:[{usel},0] op_sel_hi:[{usel},1]")
            A(f"v_pk_fma_f32 {v(UP+2*j,2)}, {v(wb,2)}, {v(gh,2)}, {v(tt,2)} op_sel:[{wsel},1,0] op_sel_hi:[{wsel},0,1] neg_lo:[0,1,0]")
    E = 242
    cfma(A, E, UP, PA, UP + 2, 244)
    for j in range(2, 16):
        cfma(A, E, E, PA, UP + 2 * j, 244)
    vGW, vGR = 14, 15
    A(f"s_lshl_b32 s{T0}, s{S_W}, 10")
    A(f"s_add_u32 s{T0}, s{T0}, {SCR0}")
    A(f"v_lshl_add_u32 v{vGR}, v{vI}, 3, s{T0}")
    A(f"v_lshl_add_u32 v{vGW}, v{vG}, 7, v{vGR}")
    G4 = 226
    allgather4(A, E, G4, vGW, vGR)
    cfma(A, G4 + 2, G4, P16, G4 + 2, 244)
    cfma(A, G4 + 4, G4 + 2, P16, G4 + 4, 244)
    cfma(A, G4 + 6, G4 + 4, P16, G4 + 6, 244)
    A.wait(vm="nonce")
    A(f"v_cmp_ne_u32 vcc, 0, v{NON}")
    A("s_cbranch_vccnz K1_HAVENONCE")
    A("s_mov_b32 s82, 0x10000")
    A.label("K1_NONCELOOP")
    A("s_sub_u32 s82, s82, 1")
    A("s_cmp_eq_u32 s82, 0")
    A("s_cbranch_scc1 K1_HAVENONCE")
    A("s_sleep 2")
    A("v_mov_b32 v9, 0")
    A(f"global_load_dwordx2 {v(NON,2)}, v9, s[{S_DBG}:{S_DBG+1}] sc1", cond=True)
    A("s_waitcnt vmcnt(0)")
    A(f"v_cmp_ne_u32 vcc, 0, v{NON}")
    A("s_cbranch_vccz K1_NONCELOOP")
    A.label("K1_HAVENONCE")
    A(f"v_mov_b32 v244, v{G4+6}")
    A(f"v_mov_b32 v245, v{G4+7}")
    A(f"v_mov_b32 v246, v{NON}")
    A(f"v_mov_b32 v247, v{NON+1}")
    A(f"s_mul_i32 s{T0}, s{S_M}, 7")
    A(f"s_add_u32 s{T0}, s{T0}, s{S_S}")
    A(f"s_lshl_b32 s{T0}, s{T0}, 10")
    A(f"s_lshl_b32 s{T1}, s{S_W}, 8")
    A(f"s_add_u32 s{T0}, s{T0}, s{T1}")
    A(f"v_lshl_add_u32 v13, v{vI}, 4, s{T0}")
    A("s_mov_b64 exec, 0xffff")
    A(f"buffer_store_dwordx4 v[244:247], v13, s[{SRD_E}:{SRD_E+3}], 0 offen sc1", tag="epub")
    A("s_mov_b64 exec, -1")
    A(f"v_mov_b32 v{PLP}, 0")
    A(f"v_mov_b32 v{PLP+1}, 0")
    A("v_mov_b32 v248, 1.0")
    A("v_mov_b32 v249, 0")
    for k, (pp, aa) in enumerate(((G4, P16), (G4 + 2, P32), (G4 + 4, P48)), start=1):
        A(f"v_cmp_eq_u32 vcc, {k}, v{vG}")
        A(f"v_cndmask_b32 v{PLP}, v{PLP}, v{pp}, vcc")
        A(f"v_cndmask_b32 v{PLP+1}, v{PLP+1}, v{pp+1}, vcc")
        A(f"v_cndmask_b32 v248, v248, v{aa}, vcc")
        A(f"v_cndmask_b32 v249, v249, v{aa+1}, vcc")
    A(f"v_mov_b32 v{P32}, v248")
    A(f"v_mov_b32 v{P32+1}, v249")
    LBA = 226
    NV = 234
    A(f"v_add_u32 v9, 1, v{vG}")
    A("v_mul_u32_u24 v9, 7168, v9")
    A(f"v_sub_u32 v{LBA}, v13, v9")
    for j in range(1, 8):
        A(f"v_subrev_u32 v{LBA+j}, {28672*j}, v{LBA}")
    A(f"s_add_u32 s{T0}, s{S_M}, 3")
    A(f"v_sub_u32 v{NV}, s{T0}, v{vG}")
    A(f"v_lshrrev_b32 v{NV}, 2, v{NV}")

    stamp(A)
    for n in range(7, 21):
        gemm_chunk(A, n, 20)

    stamp(A)
    LB = ACCS
    for j in range(8):
        A(f"buffer_load_dwordx4 {v(LB+4*j,4)}, v{LBA+j}, s[{SRD_E}:{SRD_E+3}], 0 offen sc1", tag="lb")

    CG, C1 = 250, 252
    c0 = -2.0 * 0.7978845608028654 * LOG2E
    c1 = c0 * 0.044715
    A(f"v_mov_b32 v{CG}, {fbits(c1)}")
    A(f"v_mov_b32 v{CG+1}, {fbits(c0)}")
    A(f"v_mov_b32 v{C1}, 1.0")
    A(f"v_lshlrev_b32 v12, 4, v{vLane}")
    A(f"s_mul_i32 s{S_HS}, s{S_M}, {BLK_BYTES}")
    A(f"s_lshl_b32 s{T0}, s{S_S}, 3")
    A(f"s_lshl_b32 s{T1}, s{S_W}, 1")
    A(f"s_add_u32 s{T0}, s{T0}, s{T1}")
    A(f"s_lshl_b32 s{T0}, s{T0}, 12")
    A(f"s_add_u32 s{T0}, s{S_HS}, s{T0}")
    A(f"s_add_u32 s{T1}, s{T0}, 4096")
    OUTQ = [236, 240]
    for u in range(2):
        for q in range(4):
            oq = OUTQ[q & 1]
            rb, rsel = sel(R12 + q)
            prs = [(2 * u, 0), (2 * u, 1), (2 * u + 1, 0), (2 * u + 1, 1)]
            zs = [accM(T, q) + 2 * pr for T, pr in prs]
            tmp = [244, 246] * 2
            for h in range(2):
                pp = prs[2 * h:2 * h + 2]
                Z = zs[2 * h:2 * h + 2]
                TT = [244, 246]
                for k in range(2):
                    T, pr = pp[k]
                    A(f"v_pk_fma_f32 {v(Z[k],2)}, {v(Z[k],2)}, {v(rb,2)}, {v(B1F+4*T+2*pr,2)} op_sel:[0,{rsel},0] op_sel_hi:[1,{rsel},1]")
                for k in range(2):
                    A(f"v_pk_mul_f32 {v(TT[k],2)}, {v(Z[k],2)}, {v(Z[k],2)}")
                for k in range(2):
                    A(f"v_pk_fma_f32 {v(TT[k],2)}, {v(TT[k],2)}, {v(CG,2)}, {v(CG,2)} op_sel:[0,0,1] op_sel_hi:[1,0,1]")
                for k in range(2):
                    A(f"v_pk_mul_f32 {v(TT[k],2)}, {v(TT[k],2)}, {v(Z[k],2)}")
                for k in range(2):
                    A(f"v_exp_f32 v{TT[k]}, v{TT[k]}")
                    A(f"v_exp_f32 v{TT[k]+1}, v{TT[k]+1}")
                for k in range(2):
                    A(f"v_pk_add_f32 {v(TT[k],2)}, {v(TT[k],2)}, {v(C1,2)} op_sel_hi:[1,0]")
                for k in range(2):
                    A(f"v_rcp_f32 v{TT[k]}, v{TT[k]}")
                    A(f"v_rcp_f32 v{TT[k]+1}, v{TT[k]+1}")
                for k in range(2):
                    A(f"v_pk_mul_f32 {v(Z[k],2)}, {v(Z[k],2)}, {v(TT[k],2)}")
                for k in range(2):
                    A(f"v_cvt_pk_bf16_f32 v{oq+2*h+k}, v{Z[k]}, v{Z[k]+1}")
            A(f"buffer_store_dwordx4 {v(oq,4)}, v12, s[{SRD_WS}:{SRD_WS+3}], s{T0+u} offen offset:{q*1024}", tag="hst")

    stamp(A)
    A.wait(vm="lb")
    A("s_mov_b32 s82, 0x10000")
    A.label("K1_LBCHECK")
    A("v_mov_b32 v9, 0")
    for j in range(8):
        A(f"v_cmp_eq_u64 vcc, {v(LB+4*j+2,2)}, {v(NON,2)}")
        A("v_addc_co_u32 v9, vcc, 0, v9, vcc")
    A(f"v_cmp_ne_u32 vcc, v9, v{NV}")
    A("s_cbranch_vccz K1_LBDONE")
    A("s_sub_u32 s82, s82, 1")
    A("s_cmp_eq_u32 s82, 0")
    A("s_cbranch_scc1 K1_LBDONE")
    A("s_sleep 2")
    for j in range(8):
        A(f"buffer_load_dwordx4 {v(LB+4*j,4)}, v{LBA+j}, s[{SRD_E}:{SRD_E+3}], 0 offen sc1", cond=True)
    A("s_waitcnt vmcnt(0)")
    A("s_branch K1_LBCHECK")
    A.label("K1_LBDONE")
    H = 242
    cfma(A, H, LB + 28, P256, LB + 24, 244)
    for j in range(5, -1, -1):
        cfma(A, H, H, P256, LB + 4 * j, 244)
    allgather4(A, H, G4, vGW, vGR)
    cfma(A, H, G4 + 6, P64, G4 + 4, 244)
    cfma(A, H, H, P64, G4 + 2, 244)
    cfma(A, H, H, P64, G4, 244)
    cfma(A, H, H, P32, PLP, 244)
    prev = H
    for j in range(16):
        cfma(A, UP + 2 * j, prev, PA, UP + 2 * j, 244)
        prev = UP + 2 * j
    A(f"v_lshlrev_b32 v9, 10, v{vG}")
    A(f"v_lshl_add_u32 v9, v{vI}, 2, v9")
    A(f"v_add_u32 v9, s{S_RB}, v9")
    for j in range(16):
        A(f"v_cvt_pk_bf16_f32 v{LB+j}, v{UP+2*j}, -v{UP+2*j+1}")
        A(f"ds_write_b32 v9, v{LB+j} offset:{j*64}")
    A(f"v_lshrrev_b32 v10, 2, v{vI}")
    A("v_lshlrev_b32 v10, 4, v10")
    A(f"v_and_b32 v11, 3, v{vI}")
    A("v_add_lshl_u32 v10, v10, v11, 6")
    A(f"v_lshl_add_u32 v10, v{vG}, 4, v10")
    A(f"v_add_u32 v10, s{S_RB}, v10")
    A("s_waitcnt lgkmcnt(0)")
    for q in range(4):
        A(f"ds_read_b128 {v(LB+16+4*q,4)}, v10 offset:{q*256}", tag=("tq", q))
    A(f"s_lshl_b32 s{T0}, s{S_S}, 2")
    A(f"s_add_u32 s{T0}, s{T0}, s{S_W}")
    A(f"s_add_u32 s{T0}, s{T0}, 56")
    A(f"s_lshl_b32 s{T0}, s{T0}, 12")
    A(f"s_add_u32 s{T0}, s{S_HS}, s{T0}")
    for q in range(4):
        A.wait(lg=("tq", q))
        A(f"buffer_store_dwordx4 {v(LB+16+4*q,4)}, v12, s[{SRD_WS}:{SRD_WS+3}], s{T0} offen offset:{q*1024}")
    if common.STAMPS:
        A("s_waitcnt vmcnt(0)")
    stamp(A)
    stamp_flush(A, SRD_WS, 0)
    A("s_endpgm")


def build_helper(A):
    SRD_W2, SRD_CRE, SRD_CIM, SRD_WSH = 44, 48, 52, 56
    HW = 40
    vRow8, vC8, vI, vG = 2, 3, 4, 5
    A.label("K1_HELPER")
    A.reset_counts()
    stamp_reset()
    stamp(A)
    A(f"v_lshrrev_b32 v{vRow8}, 3, v{vLane}")
    A(f"v_and_b32 v{vC8}, 7, v{vLane}")
    A(f"v_and_b32 v{vI}, 15, v{vLane}")
    A(f"v_lshrrev_b32 v{vG}, 4, v{vLane}")
    A(f"s_sub_u32 s{HW}, s2, 224")
    A(f"s_lshl_b32 s{HW}, s{HW}, 2")
    A(f"s_add_u32 s{HW}, s{HW}, s{S_W}")
    A(f"v_lshrrev_b32 v6, 1, v{vRow8}")
    A("v_lshlrev_b32 v6, 1, v6")
    A(f"v_xor_b32 v6, v6, v{vC8}")
    A("v_lshlrev_b32 v6, 4, v6")
    A("s_movk_i32 s68, 896")
    A(f"v_mad_u32_u24 v6, v{vRow8}, s68, v6")
    A(f"s_lshl_b32 s69, s{S_W}, 14")
    A(f"v_lshrrev_b32 v9, 2, v{vI}")
    A(f"v_lshl_add_u32 v9, v{vG}, 2, v9")
    A("v_lshlrev_b32 v9, 7, v9")
    A("v_add_u32 v9, s69, v9")
    A(f"v_and_b32 v10, 3, v{vI}")
    A("v_lshl_add_u32 v9, v10, 3, v9")
    A(f"v_and_b32 v10, 1, v{vG}")
    A("v_lshlrev_b32 v10, 1, v10")
    A(f"v_lshrrev_b32 v11, 3, v{vI}")
    A("v_or_b32 v10, v10, v11")
    A("v_lshlrev_b32 v10, 1, v10")
    for nt in range(4):
        A(f"v_xor_b32 v11, {2*nt}, v10")
        A(f"v_lshl_add_u32 v{12+nt}, v11, 4, v9")
    A(f"v_lshlrev_b32 v7, 4, v{vLane}")
    A(f"v_lshlrev_b32 v8, 3, v{vG}")
    A(f"v_mad_u32_u24 v8, v{vI}, s68, v8")
    A("s_waitcnt lgkmcnt(0)")
    make_srd(A, SRD_W2, S_W2, F * D * 2)
    make_srd(A, SRD_CRE, S_CRE, D * P * 2)
    make_srd(A, SRD_CIM, S_CIM, D * P * 2)
    make_srd(A, SRD_WSH, S_WS, WS_BYTES)
    OUTM = [82, 83, 84, 85]
    OUTS = [86, 87]

    def mlp_item(t):
        A(f"s_add_u32 s70, s{HW}, {128*t}")
        A("s_mul_i32 s71, s70, 1171")
        A("s_lshr_b32 s71, s71, 16")
        A("s_mul_i32 s72, s71, 56")
        A("s_sub_u32 s72, s70, s72")
        A(f"s_mul_i32 s73, s71, {BLK_BYTES}")
        A("s_lshl_b32 s74, s72, 12")
        A("s_add_u32 s73, s73, s74")
        A(f"s_add_u32 s{OUTM[t]}, s73, {WF0}")
        A("s_mul_i32 s72, s72, 28672")
        A("s_lshl_b32 s71, s71, 7")
        A("s_add_u32 s72, s72, s71")
        A(f"s_add_u32 m0, s69, {t*4096}")
        for jj in range(4):
            off = f" offset:{jj*1024}" if jj else ""
            A(f"buffer_load_dwordx4 v6, s[{SRD_W2}:{SRD_W2+3}], s72 offen{off} lds")
            if jj < 3:
                A("s_add_u32 s72, s72, 6144")

    def ssm_item(t):
        A(f"s_add_u32 s70, s{HW}, {128*t}")
        A("s_mul_i32 s71, s70, 2341")
        A("s_lshr_b32 s71, s71, 16")
        A("s_mul_i32 s72, s71, 28")
        A("s_sub_u32 s72, s70, s72")
        A(f"s_mul_i32 s73, s71, {BLK_BYTES}")
        A("s_add_u32 s74, s72, 56")
        A("s_lshl_b32 s74, s74, 12")
        A("s_add_u32 s73, s73, s74")
        A(f"s_add_u32 s{OUTS[t]}, s73, {WF0}")
        A(f"s_mul_i32 s71, s71, {64*896}")
        A("s_lshl_b32 s72, s72, 5")
        A("s_add_u32 s72, s72, s71")
        for nt in range(4):
            A(f"buffer_load_dwordx2 {v(32+t*16+nt*4,2)}, v8, s[{SRD_CRE}:{SRD_CRE+3}], s72 offen")
            A(f"buffer_load_dwordx2 {v(32+t*16+nt*4+2,2)}, v8, s[{SRD_CIM}:{SRD_CIM+3}], s72 offen")
            if nt < 3:
                A(f"s_add_u32 s72, s72, {16*896}")

    for t in range(3):
        mlp_item(t)
    ssm_item(0)
    A(f"s_cmp_ge_u32 s{HW}, 8")
    A("s_cbranch_scc1 K1H_NO3")
    mlp_item(3)
    A.label("K1H_NO3")
    A(f"s_cmp_ge_u32 s{HW}, 68")
    A("s_cbranch_scc1 K1H_NOS1")
    ssm_item(1)
    A.label("K1H_NOS1")
    A("s_waitcnt vmcnt(0)")
    A("s_mov_b32 s75, 0x05040100")
    A("s_mov_b32 s76, 0x07060302")

    def mlp_out(t):
        for nt in range(4):
            for hf in range(2):
                A(f"ds_read_b64_tr_b16 {v(64+nt*4+2*hf,2)}, v{12+nt} offset:{t*4096+hf*2048}")
        A("s_waitcnt lgkmcnt(0)")
        for nt in range(4):
            A(f"buffer_store_dwordx4 {v(64+nt*4,4)}, v7, s[{SRD_WSH}:{SRD_WSH+3}], s{OUTM[t]} offen offset:{nt*1024}")
        A("s_nop 1")

    def ssm_out(t):
        for nt in range(4):
            b = 32 + t * 16 + nt * 4
            o = 80 + nt * 4
            A(f"v_perm_b32 v{o}, v{b+2}, v{b}, s75")
            A(f"v_perm_b32 v{o+1}, v{b+2}, v{b}, s76")
            A(f"v_perm_b32 v{o+2}, v{b+3}, v{b+1}, s75")
            A(f"v_perm_b32 v{o+3}, v{b+3}, v{b+1}, s76")
            A(f"buffer_store_dwordx4 {v(o,4)}, v7, s[{SRD_WSH}:{SRD_WSH+3}], s{OUTS[t]} offen offset:{nt*1024}")
        A("s_nop 1")

    for t in range(3):
        mlp_out(t)
    ssm_out(0)
    A(f"s_cmp_ge_u32 s{HW}, 8")
    A("s_cbranch_scc1 K1H_NO3B")
    mlp_out(3)
    A.label("K1H_NO3B")
    A(f"s_cmp_ge_u32 s{HW}, 68")
    A("s_cbranch_scc1 K1H_NOS1B")
    ssm_out(1)
    A.label("K1H_NOS1B")
    if common.STAMPS:
        A("s_waitcnt vmcnt(0)")
    stamp(A)
    stamp_flush(A, SRD_WSH, 0)
    A("s_endpgm")


def build_k1(name):
    A = Asm()
    A("s_cmp_ge_u32 s2, 256")
    A("s_cbranch_scc1 K1_EXIT")
    load_kernargs(A)
    A("v_lshrrev_b32 v1, 6, v0")
    A("v_and_b32 v0, 63, v0")
    A(f"v_readfirstlane_b32 s{S_W}, v1")
    A("s_cmp_ge_u32 s2, 224")
    A("s_cbranch_scc1 K1_HELPER")
    build_main(A)
    build_helper(A)
    A.label("K1_EXIT")
    A("s_endpgm")
    A.pad_hazards()
    return kernel_header(name) + A.text(), kernel_desc(name, 512, 102, 256), A
```

```python
from common import *
import common

NBUF = 6
ACCM, ACCS = 128, 192
PX, PB2, PDS, PST = 192, 200, 208, 216


def acc(base, nt, ql):
    return base + (nt * 4 + ql) * 4


def phase2_setup_addr(A, vH, vW, s_w, sc):
    pass


def build_k2(name):
    A = Asm()
    S_M, S_S, S_W = 40, 41, 3
    SRD_WS, SRD_X, SRD_OUT = 44, 48, 52
    sHm, sWm, sHs, sWs = 56, 57, 58, 59
    T0, T1 = 60, 61
    vH = [1, 2, 3, 4]
    vW = 5
    vTok, vXo, vPo = 6, 7, 8

    A("s_cmp_ge_u32 s2, 224")
    A("s_cbranch_scc1 K2_END")
    stamp_reset()
    stamp(A)
    load_kernargs(A)
    A("v_lshrrev_b32 v1, 6, v0")
    A("v_and_b32 v0, 63, v0")
    A(f"v_readfirstlane_b32 s{S_W}, v1")
    decode_ms(A, S_M, S_S, T0, T1)
    A(f"v_lshlrev_b32 v{vW}, 4, v0")
    for ql in range(4):
        A(f"s_add_u32 s{T0}, s{S_W}, {ql}")
        A(f"s_and_b32 s{T0}, s{T0}, 3")
        A(f"s_lshl_b32 s{T0}, s{T0}, 10")
        A(f"v_add_u32 v{vH[ql]}, s{T0}, v{vW}")
    A(f"s_mul_i32 s{sHm}, s{S_M}, {BLK_BYTES}")
    A(f"s_mul_i32 s{sWm}, s{S_S}, {BLK_BYTES}")
    A(f"s_add_u32 s{sWm}, s{sWm}, {WF0}")
    A(f"s_mul_i32 s{T0}, s{S_W}, {7*4096}")
    A(f"s_add_u32 s{T0}, s{T0}, {56*4096}")
    A(f"s_add_u32 s{sHs}, s{sHm}, s{T0}")
    A(f"s_add_u32 s{sWs}, s{sWm}, s{T0}")
    A(f"s_mul_i32 s{T0}, s{S_W}, {14*4096}")
    A(f"s_add_u32 s{sHm}, s{sHm}, s{T0}")
    A(f"s_add_u32 s{sWm}, s{sWm}, s{T0}")
    A("v_and_b32 v9, 15, v0")
    A("v_lshrrev_b32 v10, 2, v9")
    A("v_lshlrev_b32 v10, 4, v10")
    A("v_and_b32 v9, 3, v9")
    A("v_add_u32 v9, v9, v10")
    A(f"s_lshl_b32 s{T0}, s{S_M}, 6")
    A(f"s_lshl_b32 s{T1}, s{S_W}, 2")
    A(f"s_add_u32 s{T0}, s{T0}, s{T1}")
    A(f"v_add_u32 v{vTok}, s{T0}, v9")
    A("v_lshrrev_b32 v10, 4, v0")
    A(f"s_lshl_b32 s{T0}, s{S_S}, 6")
    A(f"v_lshl_add_u32 v10, v10, 2, s{T0}")
    A(f"v_lshlrev_b32 v{vPo}, 1, v10")
    A(f"s_movk_i32 s{T0}, 896")
    A(f"v_mad_u32_u24 v{vXo}, v{vTok}, s{T0}, v{vPo}")
    A("s_waitcnt lgkmcnt(0)")
    make_srd(A, SRD_WS, S_WS, WS_BYTES)
    make_srd(A, SRD_X, S_X, L * D * 2)
    make_srd(A, SRD_OUT, S_OUT, L * D * 4)

    def issue_loads(i, part=None):
        b = i % NBUF
        sh, sw = (sHm, sWm) if i < 14 else (sHs, sWs)
        out = []
        for nt in range(4):
            out.append(("W", nt, f"buffer_load_dwordx4 {a(32*b+16+4*nt,4)}, v{vW}, s[{SRD_WS}:{SRD_WS+3}], s{sw} offen offset:{nt*1024}"))
        for ql in range(4):
            out.append(("H", ql, f"buffer_load_dwordx4 {a(32*b+4*ql,4)}, v{vH[ql]}, s[{SRD_WS}:{SRD_WS+3}], s{sh} offen"))
        adv = [f"s_add_u32 s{sh}, s{sh}, 4096", f"s_add_u32 s{sw}, s{sw}, 4096"]
        return out, adv

    for i in range(NBUF):
        lds, adv = issue_loads(i)
        for _, _, t in lds:
            A(t, tag=("st", i))
        for t in adv:
            A(t)
    for nt in range(4):
        A(f"buffer_load_dwordx2 {a(PX+2*nt,2)}, v{vXo}, s[{SRD_X}:{SRD_X+3}], 0 offen offset:{nt*32}", tag="par")
    for nt in range(4):
        A(f"global_load_dwordx2 {a(PB2+2*nt,2)}, v{vPo}, s[{S_B2}:{S_B2+1}] offset:{nt*32}", tag="par")
        A(f"global_load_dwordx2 {a(PDS+2*nt,2)}, v{vPo}, s[{S_DSK}:{S_DSK+1}] offset:{nt*32}", tag="par")
    A(f"v_lshlrev_b32 v9, 3, v{vTok}")
    A(f"s_mov_b32 s{T0}, {ST0}")
    A(f"buffer_load_dwordx2 {a(PST,2)}, v9, s[{SRD_WS}:{SRD_WS+3}], s{T0} offen", tag="par")

    for i in range(21):
        b = i % NBUF
        base = ACCM if i < 14 else ACCS
        first = i in (0, 14)
        A.wait(vm=("st", i))
        if i in (0, 7, 14):
            stamp(A)
        nxt = i + NBUF
        lds, adv = issue_loads(nxt) if nxt < 21 else ([], [])
        Wl = [t for k, _, t in lds if k == "W"]
        Hl = [t for k, _, t in lds if k == "H"]
        for nt in range(4):
            for ql in range(4):
                c = "0" if first else v(acc(base, nt, ql), 4)
                A(f"v_mfma_f32_16x16x32_bf16 {v(acc(base,nt,ql),4)}, {a(32*b+16+4*nt,4)}, {a(32*b+4*ql,4)}, {c}")
                if nt == 3 and Hl:
                    A(Hl[ql], tag=("st", nxt))
            if Wl:
                A(Wl[nt], tag=("st", nxt))
        for t in adv:
            A(t)

    stamp(A)
    vWr = [None, 9, 10, 11]
    vRd = 12
    for ql in range(1, 4):
        A(f"s_add_u32 s{T0}, s{S_W}, {ql}")
        A(f"s_and_b32 s{T0}, s{T0}, 3")
        A(f"s_mul_i32 s{T0}, s{T0}, {3*8192}")
        A(f"s_add_u32 s{T0}, s{T0}, {(ql-1)*8192}")
        A(f"v_add_u32 v{vWr[ql]}, s{T0}, v{vW}")
    A(f"s_mul_i32 s{T0}, s{S_W}, {3*8192}")
    A(f"v_add_u32 v{vRd}, s{T0}, v{vW}")
    for st, base in ((0, ACCM), (1, ACCS)):
        for ql in range(1, 4):
            for nt in range(4):
                A(f"ds_write_b128 v{vWr[ql]}, {v(acc(base,nt,ql),4)} offset:{(st*4+nt)*1024}")
    A("s_waitcnt lgkmcnt(0)")
    A("s_barrier")
    RB = 32
    for slot in range(3):
        for st in range(2):
            for nt in range(4):
                A(f"ds_read_b128 {v(RB+((slot*8+st*4+nt)*4),4)}, v{vRd} offset:{slot*8192+(st*4+nt)*1024}", tag=("rd", slot, st))
    for slot in range(3):
        for st, base in ((0, ACCM), (1, ACCS)):
            A.wait(lg=("rd", slot, st))
            for nt in range(4):
                r = RB + (slot * 8 + st * 4 + nt) * 4
                d = acc(base, nt, 0)
                A(f"v_pk_add_f32 {v(d,2)}, {v(d,2)}, {v(r,2)}")
                A(f"v_pk_add_f32 {v(d+2,2)}, {v(d+2,2)}, {v(r+2,2)}")
    stamp(A)
    A.wait(vm="par")
    vX, vB, vD, vSt = 32, 40, 48, 56
    for k in range(8):
        A(f"v_accvgpr_read_b32 v{vX+k}, a{PX+k}")
        A(f"v_accvgpr_read_b32 v{vB+k}, a{PB2+k}")
        A(f"v_accvgpr_read_b32 v{vD+k}, a{PDS+k}")
    A(f"v_accvgpr_read_b32 v{vSt}, a{PST}")
    A(f"v_accvgpr_read_b32 v{vSt+1}, a{PST+1}")
    cN = 58
    A(f"v_mov_b32 v{cN}, {fbits(-LOG2E)}")
    A(f"v_mov_b32 v{cN+1}, 1.0")
    A(f"v_lshlrev_b32 v{vXo}, 1, v{vXo}")
    for nt in range(4):
        O = 96 + nt * 4
        for pr in range(2):
            t = 60 + pr * 16
            x0, b0, d0, z0, e0, tmp = t, t + 2, t + 4, t + 6, t + 8, t + 10
            m0 = acc(ACCM, nt, 0) + 2 * pr
            s0 = acc(ACCS, nt, 0) + 2 * pr
            k = nt * 2 + pr
            A(f"v_lshlrev_b32 v{x0}, 16, v{vX+k}")
            A(f"v_and_b32 v{x0+1}, 0xffff0000, v{vX+k}")
            A(f"v_lshlrev_b32 v{b0}, 16, v{vB+k}")
            A(f"v_and_b32 v{b0+1}, 0xffff0000, v{vB+k}")
            A(f"v_lshlrev_b32 v{d0}, 16, v{vD+k}")
            A(f"v_and_b32 v{d0+1}, 0xffff0000, v{vD+k}")
            bf16r_pair(A, m0, m0 + 1, tmp)
            A(f"v_pk_add_f32 {v(z0,2)}, {v(m0,2)}, {v(b0,2)}")
            bf16r_pair(A, z0, z0 + 1, tmp)
            A(f"v_pk_mul_f32 {v(e0,2)}, {v(z0,2)}, {v(cN,2)} op_sel_hi:[1,0]")
            A(f"v_exp_f32 v{e0}, v{e0}")
            A(f"v_exp_f32 v{e0+1}, v{e0+1}")
            A(f"v_pk_add_f32 {v(b0,2)}, {v(x0,2)}, {v(vSt,2)} op_sel_hi:[1,0] neg_lo:[0,1] neg_hi:[0,1]")
            A(f"v_pk_add_f32 {v(e0,2)}, {v(e0,2)}, {v(cN,2)} op_sel:[0,1] op_sel_hi:[1,1]")
            bf16r_pair(A, b0, b0 + 1, tmp)
            A(f"v_rcp_f32 v{e0}, v{e0}")
            A(f"v_rcp_f32 v{e0+1}, v{e0+1}")
            A(f"v_pk_mul_f32 {v(b0,2)}, {v(b0,2)}, {v(vSt,2)} op_sel:[0,1] op_sel_hi:[1,1]")
            bf16r_pair(A, b0, b0 + 1, tmp)
            A(f"v_pk_mul_f32 {v(z0,2)}, {v(z0,2)}, {v(e0,2)}")
            bf16r_pair(A, z0, z0 + 1, tmp)
            A(f"v_pk_mul_f32 {v(b0,2)}, {v(b0,2)}, {v(d0,2)}")
            bf16r_pair(A, b0, b0 + 1, tmp)
            A(f"v_pk_add_f32 {v(s0,2)}, {v(s0,2)}, {v(b0,2)}")
            A(f"v_pk_fma_f32 {v(O+2*pr,2)}, {v(s0,2)}, {v(z0,2)}, {v(x0,2)}")
        A(f"buffer_store_dwordx4 {v(O,4)}, v{vXo}, s[{SRD_OUT}:{SRD_OUT+3}], 0 offen offset:{nt*64}")
    if common.STAMPS:
        stamp(A)
        A("s_waitcnt vmcnt(0)")
    stamp(A)
    stamp_flush(A, SRD_WS, 1)
    A.label("K2_END")
    A("s_endpgm")
    A.pad_hazards()
    return kernel_header(name) + A.text(), kernel_desc(name, 512, 96, 256), A
```

```python
import sys
from common import *
import k1, k2

HEADER = open("cdna_kernels/" + NAME + ".s.ref").read().split("; Override launch geometry")[0]

def build_2k():
    n1 = "ssm_mlp_phase1_kernel"
    n2 = "ssm_mlp_phase2_kernel"
    c1, d1, A1 = k1.build_k1(n1)
    c2, d2, A2 = k2.build_k2(n2)
    out = HEADER
    out += f"; @launch kernel={n1} grid=(256,1,1) block=(256,1,1) lds={k1.LDS_K1}\n"
    out += f"; @launch kernel={n2} grid=(224,1,1) block=(256,1,1) lds=98304\n"
    out += '.amdgcn_target "amdgcn-amd-amdhsa--gfx950"\n.text\n'
    out += c1 + c2
    out += '.section .rodata,"a"\n.p2align 6\n' + d1 + ".p2align 6\n" + d2
    print(f"k1: {A1.count()} instructions, k2: {A2.count()} instructions", file=sys.stderr)
    return out

if __name__ == "__main__":
    import common
    if "--stamps" in sys.argv:
        common.STAMPS = True
        sys.argv.remove("--stamps")
    dst = sys.argv[1] if len(sys.argv) > 1 else "cdna_kernels/" + NAME + ".s"
    open(dst, "w").write(build_2k())
```

```python
from common import *
import common

NBUF = 6
ACCM, ACCS = 128, 192
PX, PB2, PDS, PST = 192, 200, 208, 216


def acc(base, nt, ql):
    return base + (nt * 4 + ql) * 4


def phase2_setup_addr(A, vH, vW, s_w, sc):
    pass


def build_k2(name):
    A = Asm()
    S_M, S_S, S_W = 40, 41, 3
    SRD_WS, SRD_X, SRD_OUT = 44, 48, 52
    sHm, sWm, sHs, sWs = 56, 57, 58, 59
    T0, T1 = 60, 61
    vH = [1, 2, 3, 4]
    vW = 5
    vTok, vXo, vPo = 6, 7, 8

    A("s_cmp_ge_u32 s2, 224")
    A("s_cbranch_scc1 K2_END")
    stamp_reset()
    stamp(A)
    load_kernargs(A)
    A("v_lshrrev_b32 v1, 6, v0")
    A("v_and_b32 v0, 63, v0")
    A(f"v_readfirstlane_b32 s{S_W}, v1")
    decode_ms(A, S_M, S_S, T0, T1)
    A(f"v_lshlrev_b32 v{vW}, 4, v0")
    for ql in range(4):
        A(f"s_add_u32 s{T0}, s{S_W}, {ql}")
        A(f"s_and_b32 s{T0}, s{T0}, 3")
        A(f"s_lshl_b32 s{T0}, s{T0}, 10")
        A(f"v_add_u32 v{vH[ql]}, s{T0}, v{vW}")
    A(f"s_mul_i32 s{sHm}, s{S_M}, {BLK_BYTES}")
    A(f"s_mul_i32 s{sWm}, s{S_S}, {BLK_BYTES}")
    A(f"s_add_u32 s{sWm}, s{sWm}, {WF0}")
    A(f"s_mul_i32 s{T0}, s{S_W}, {7*4096}")
    A(f"s_add_u32 s{T0}, s{T0}, {56*4096}")
    A(f"s_add_u32 s{sHs}, s{sHm}, s{T0}")
    A(f"s_add_u32 s{sWs}, s{sWm}, s{T0}")
    A(f"s_mul_i32 s{T0}, s{S_W}, {14*4096}")
    A(f"s_add_u32 s{sHm}, s{sHm}, s{T0}")
    A(f"s_add_u32 s{sWm}, s{sWm}, s{T0}")
    A("v_and_b32 v9, 15, v0")
    A("v_lshrrev_b32 v10, 2, v9")
    A("v_lshlrev_b32 v10, 4, v10")
    A("v_and_b32 v9, 3, v9")
    A("v_add_u32 v9, v9, v10")
    A(f"s_lshl_b32 s{T0}, s{S_M}, 6")
    A(f"s_lshl_b32 s{T1}, s{S_W}, 2")
    A(f"s_add_u32 s{T0}, s{T0}, s{T1}")
    A(f"v_add_u32 v{vTok}, s{T0}, v9")
    A("v_lshrrev_b32 v10, 4, v0")
    A(f"s_lshl_b32 s{T0}, s{S_S}, 6")
    A(f"v_lshl_add_u32 v10, v10, 2, s{T0}")
    A(f"v_lshlrev_b32 v{vPo}, 1, v10")
    A(f"s_movk_i32 s{T0}, 896")
    A(f"v_mad_u32_u24 v{vXo}, v{vTok}, s{T0}, v{vPo}")
    A("s_waitcnt lgkmcnt(0)")
    make_srd(A, SRD_WS, S_WS, WS_BYTES)
    make_srd(A, SRD_X, S_X, L * D * 2)
    make_srd(A, SRD_OUT, S_OUT, L * D * 4)

    def issue_loads(i, part=None):
        b = i % NBUF
        sh, sw = (sHm, sWm) if i < 14 else (sHs, sWs)
        out = []
        for nt in range(4):
            out.append(("W", nt, f"buffer_load_dwordx4 {a(32*b+16+4*nt,4)}, v{vW}, s[{SRD_WS}:{SRD_WS+3}], s{sw} offen offset:{nt*1024}"))
        for ql in range(4):
            out.append(("H", ql, f"buffer_load_dwordx4 {a(32*b+4*ql,4)}, v{vH[ql]}, s[{SRD_WS}:{SRD_WS+3}], s{sh} offen"))
        adv = [f"s_add_u32 s{sh}, s{sh}, 4096", f"s_add_u32 s{sw}, s{sw}, 4096"]
        return out, adv

    for i in range(NBUF):
        lds, adv = issue_loads(i)
        for _, _, t in lds:
            A(t, tag=("st", i))
        for t in adv:
            A(t)
    for nt in range(4):
        A(f"buffer_load_dwordx2 {a(PX+2*nt,2)}, v{vXo}, s[{SRD_X}:{SRD_X+3}], 0 offen offset:{nt*32}", tag="par")
    for nt in range(4):
        A(f"global_load_dwordx2 {a(PB2+2*nt,2)}, v{vPo}, s[{S_B2}:{S_B2+1}] offset:{nt*32}", tag="par")
        A(f"global_load_dwordx2 {a(PDS+2*nt,2)}, v{vPo}, s[{S_DSK}:{S_DSK+1}] offset:{nt*32}", tag="par")
    A(f"v_lshlrev_b32 v9, 3, v{vTok}")
    A(f"s_mov_b32 s{T0}, {ST0}")
    A(f"buffer_load_dwordx2 {a(PST,2)}, v9, s[{SRD_WS}:{SRD_WS+3}], s{T0} offen", tag="par")

    for i in range(21):
        b = i % NBUF
        base = ACCM if i < 14 else ACCS
        first = i in (0, 14)
        A.wait(vm=("st", i))
        if i in (0, 7, 14):
            stamp(A)
        nxt = i + NBUF
        lds, adv = issue_loads(nxt) if nxt < 21 else ([], [])
        Wl = [t for k, _, t in lds if k == "W"]
        Hl = [t for k, _, t in lds if k == "H"]
        for nt in range(4):
            for ql in range(4):
                c = "0" if first else v(acc(base, nt, ql), 4)
                A(f"v_mfma_f32_16x16x32_bf16 {v(acc(base,nt,ql),4)}, {a(32*b+16+4*nt,4)}, {a(32*b+4*ql,4)}, {c}")
                if nt == 3 and Hl:
                    A(Hl[ql], tag=("st", nxt))
            if Wl:
                A(Wl[nt], tag=("st", nxt))
        for t in adv:
            A(t)

    stamp(A)
    vWr = [None, 9, 10, 11]
    vRd = 12
    for ql in range(1, 4):
        A(f"s_add_u32 s{T0}, s{S_W}, {ql}")
        A(f"s_and_b32 s{T0}, s{T0}, 3")
        A(f"s_mul_i32 s{T0}, s{T0}, {3*8192}")
        A(f"s_add_u32 s{T0}, s{T0}, {(ql-1)*8192}")
        A(f"v_add_u32 v{vWr[ql]}, s{T0}, v{vW}")
    A(f"s_mul_i32 s{T0}, s{S_W}, {3*8192}")
    A(f"v_add_u32 v{vRd}, s{T0}, v{vW}")
    for st, base in ((0, ACCM), (1, ACCS)):
        for ql in range(1, 4):
            for nt in range(4):
                A(f"ds_write_b128 v{vWr[ql]}, {v(acc(base,nt,ql),4)} offset:{(st*4+nt)*1024}")
    A("s_waitcnt lgkmcnt(0)")
    A("s_barrier")
    RB = 32
    for slot in range(3):
        for st in range(2):
            for nt in range(4):
                A(f"ds_read_b128 {v(RB+((slot*8+st*4+nt)*4),4)}, v{vRd} offset:{slot*8192+(st*4+nt)*1024}", tag=("rd", slot, st))
    for slot in range(3):
        for st, base in ((0, ACCM), (1, ACCS)):
            A.wait(lg=("rd", slot, st))
            for nt in range(4):
                r = RB + (slot * 8 + st * 4 + nt) * 4
                d = acc(base, nt, 0)
                A(f"v_pk_add_f32 {v(d,2)}, {v(d,2)}, {v(r,2)}")
                A(f"v_pk_add_f32 {v(d+2,2)}, {v(d+2,2)}, {v(r+2,2)}")
    stamp(A)
    A.wait(vm="par")
    vX, vB, vD, vSt = 32, 40, 48, 56
    for k in range(8):
        A(f"v_accvgpr_read_b32 v{vX+k}, a{PX+k}")
        A(f"v_accvgpr_read_b32 v{vB+k}, a{PB2+k}")
        A(f"v_accvgpr_read_b32 v{vD+k}, a{PDS+k}")
    A(f"v_accvgpr_read_b32 v{vSt}, a{PST}")
    A(f"v_accvgpr_read_b32 v{vSt+1}, a{PST+1}")
    cN = 58
    A(f"v_mov_b32 v{cN}, {fbits(-LOG2E)}")
    A(f"v_mov_b32 v{cN+1}, 1.0")
    A(f"v_lshlrev_b32 v{vXo}, 1, v{vXo}")
    for nt in range(4):
        O = 96 + nt * 4
        for pr in range(2):
            t = 60 + pr * 16
            x0, b0, d0, z0, e0, tmp = t, t + 2, t + 4, t + 6, t + 8, t + 10
            m0 = acc(ACCM, nt, 0) + 2 * pr
            s0 = acc(ACCS, nt, 0) + 2 * pr
            k = nt * 2 + pr
            A(f"v_lshlrev_b32 v{x0}, 16, v{vX+k}")
            A(f"v_and_b32 v{x0+1}, 0xffff0000, v{vX+k}")
            A(f"v_lshlrev_b32 v{b0}, 16, v{vB+k}")
            A(f"v_and_b32 v{b0+1}, 0xffff0000, v{vB+k}")
            A(f"v_lshlrev_b32 v{d0}, 16, v{vD+k}")
            A(f"v_and_b32 v{d0+1}, 0xffff0000, v{vD+k}")
            bf16r_pair(A, m0, m0 + 1, tmp)
            A(f"v_pk_add_f32 {v(z0,2)}, {v(m0,2)}, {v(b0,2)}")
            bf16r_pair(A, z0, z0 + 1, tmp)
            A(f"v_pk_mul_f32 {v(e0,2)}, {v(z0,2)}, {v(cN,2)} op_sel_hi:[1,0]")
            A(f"v_exp_f32 v{e0}, v{e0}")
            A(f"v_exp_f32 v{e0+1}, v{e0+1}")
            A(f"v_pk_add_f32 {v(b0,2)}, {v(x0,2)}, {v(vSt,2)} op_sel_hi:[1,0] neg_lo:[0,1] neg_hi:[0,1]")
            A(f"v_pk_add_f32 {v(e0,2)}, {v(e0,2)}, {v(cN,2)} op_sel:[0,1] op_sel_hi:[1,1]")
            bf16r_pair(A, b0, b0 + 1, tmp)
            A(f"v_rcp_f32 v{e0}, v{e0}")
            A(f"v_rcp_f32 v{e0+1}, v{e0+1}")
            A(f"v_pk_mul_f32 {v(b0,2)}, {v(b0,2)}, {v(vSt,2)} op_sel:[0,1] op_sel_hi:[1,1]")
            bf16r_pair(A, b0, b0 + 1, tmp)
            A(f"v_pk_mul_f32 {v(z0,2)}, {v(z0,2)}, {v(e0,2)}")
            bf16r_pair(A, z0, z0 + 1, tmp)
            A(f"v_pk_mul_f32 {v(b0,2)}, {v(b0,2)}, {v(d0,2)}")
            bf16r_pair(A, b0, b0 + 1, tmp)
            A(f"v_pk_add_f32 {v(s0,2)}, {v(s0,2)}, {v(b0,2)}")
            A(f"v_pk_fma_f32 {v(O+2*pr,2)}, {v(s0,2)}, {v(z0,2)}, {v(x0,2)}")
        A(f"buffer_store_dwordx4 {v(O,4)}, v{vXo}, s[{SRD_OUT}:{SRD_OUT+3}], 0 offen offset:{nt*64}")
    if common.STAMPS:
        stamp(A)
        A("s_waitcnt vmcnt(0)")
    stamp(A)
    stamp_flush(A, SRD_WS, 1)
    if common.STAMPS:
        A("s_or_b32 s83, s2, s3")
        A("s_cmp_lg_u32 s83, 0")
        A("s_cbranch_scc1 K2_NODBG")
        A("v_mbcnt_lo_u32_b32 v2, -1, 0")
        A("v_mbcnt_hi_u32_b32 v2, -1, v2")
        A("v_lshlrev_b32 v2, 2, v2")
        A(f"s_mov_b32 s83, {STAMP0}")
        A(f"buffer_load_dword v1, v2, s[{SRD_WS}:{SRD_WS+3}], s83 offen")
        A("s_waitcnt vmcnt(0)")
        for k in range(7):
            A(f"v_writelane_b32 v1, s{84+2*(k+1)}, {9+k}")
        A("s_mov_b64 exec, 0xffff")
        A(f"global_store_dword v2, v1, s[{S_DBG}:{S_DBG+1}]")
        A("s_mov_b64 exec, -1")
        A.label("K2_NODBG")
    A.label("K2_END")
    A("s_endpgm")
    A.pad_hazards()
    return kernel_header(name) + A.text(), kernel_desc(name, 512, 102, 256), A
```
